```python
import torch

def _softmax(x, axis=-1):
    return torch.softmax(x, dim=axis)
def _gelu(x):
    return torch.nn.functional.gelu(x, approximate="tanh")
def _silu(x):
    return torch.nn.functional.silu(x)
def _sigmoid(x):
    return torch.sigmoid(x)
def _layernorm(x, axis=-1, eps=1e-5):
    m = x.mean(dim=axis, keepdim=True)
    v = x.var(dim=axis, keepdim=True, unbiased=False)
    return (x - m) / torch.sqrt(v + eps)
def _scatter_add(tgt, idx, src, axis=0):
    return tgt.clone().index_add_(axis, idx, src)
def _segment_sum(src, seg, n):
    out = torch.zeros((n,) + src.shape[1:], dtype=src.dtype)
    return out.index_add_(0, seg, src)
def _pad(x, pw):
    flat = tuple(v for pair in reversed(pw) for v in pair)
    return torch.nn.functional.pad(x, flat)

kernel_name = 'standalone__mha_softmax__near_ridge'

def setup_inputs():

    _w = (lambda a: (lambda t: t.to(torch.bfloat16) if t.is_floating_point() else t)(torch.as_tensor(a)))
    B, H, Sq, Sk, D = 8, 32, 288, 2048, 128
    return {
        "q": _w((lambda *s: torch.randn(*s, dtype=torch.bfloat16) * 0.8)(B, H, Sq, D)),
        "k": _w((lambda *s: torch.randn(*s, dtype=torch.bfloat16) * 0.8)(B, H, Sk, D)),
        "v": _w((lambda *s: torch.randn(*s, dtype=torch.bfloat16) * 0.05)(B, H, Sk, D)),
    }

def reference(q, k, v):
    scale = q.shape[-1] ** -0.5
    scores = torch.einsum("bhqd,bhkd->bhqk", q, k) * scale
    p = _softmax(scores, axis=-1)
    return torch.einsum("bhqk,bhkd->bhqd", p, v)
```

```python
import sys, argparse, re
ap = argparse.ArgumentParser()
ap.add_argument("--nt", default="nt")
ap.add_argument("--qnt", default="nt")
ap.add_argument("--ont", default="")
ap.add_argument("--rot", type=int, default=0)
ap.add_argument("--stamp", type=int, default=0)
ap.add_argument("--nodma", type=int, default=0)
ap.add_argument("--forcefb", type=int, default=0)
ap.add_argument("--report", type=int, default=0)
ap.add_argument("--depth", type=int, default=3)
ap.add_argument("--msum", default="8,1,4,6")
ap.add_argument("--dmode", default="g4")
ap.add_argument("--abl", default="")
ap.add_argument("--align", type=int, default=1)
args = ap.parse_args()
MSUM = set(int(x) for x in args.msum.split(","))
assert 8 in MSUM
DEPTH = args.depth

KN = "standalone__mha_softmax__near_ridge_kernel"
L = []
def e(s): L.append("    " + s)
def lab(s): L.append(s + ":")
def c(s): L.append("    ; " + s)

def O(x, dt): return 16 + 32*x + 4*dt
SV = 176; PV = 200; CI = 212
KA0 = 232; VA0 = 234; KA = 238; VA = 240; DK = 244; DV = 248; LV = 252
QA = 0
def KF(b, kt, ks): return 80 + 32*b + 16*kt + 4*ks
def VF(b, dt): return 144 + 32*b + 4*dt
LA = 208; ONES = 228; ZER = 232
SK_, SV_, SQ_, SO_ = 8, 12, 16, 20
sW = 24; sGOFF = 26; sFB = 27; sREM = 28; sSB = [30, 31]; sT = 34; sCNT = 35; sPASS = 36; sC = 37; sT2 = 38; sG0 = 39
RING = 163840; SLOT = 32768; QBASE = 65536
def srd(b): return f"s[{b}:{b+3}]"
def vr(b, n): return f"v[{b}:{b+n-1}]"
def ar(b, n): return f"a[{b}:{b+n-1}]"
MF = "v_mfma_f32_16x16x32_bf16"
MF32 = "v_mfma_f32_32x32x16_bf16"

hdr = open("standalone__mha_softmax__near_ridge.s.ref").read().split("\n")
for ln in hdr:
    if ln.startswith("; @launch"): break
    if ln.startswith(";"): L.append(ln)
L.append("; @launch grid=(256,1,1) block=(256,1,1) lds=163840")
L.append('.amdgcn_target "amdgcn-amd-amdhsa--gfx950"')
L.append(f".text\n.globl {KN}\n.p2align 8\n.type {KN},@function")
lab(KN)
e("s_cmp_ge_u32 s2, 256")
e("s_cbranch_scc1 L_end")
e("s_load_dwordx8 s[40:47], s[0:1], 0")
if args.stamp:
    e("s_load_dwordx2 s[60:61], s[0:1], 32")
    e("s_memtime s[62:63]")
    e("s_memrealtime s[64:65]")
c("pull this kernel's code into L2 so that instruction fetch never goes to HBM")
e("s_getpc_b64 s[48:49]")
lab("L_pc")
e("v_lshlrev_b32 v1, 6, v0")
e("v_min_u32 v1, L_codeend-L_pc-4, v1")
e(f"global_load_dword v{SV}, v1, s[48:49]")
e("v_lshrrev_b32 v1, 6, v0")
e("v_and_b32 v2, 63, v0")
e(f"v_readfirstlane_b32 s{sW}, v1")
e("v_lshrrev_b32 v6, 3, v2")
e("v_and_b32 v7, 7, v2")
c("DMA per-lane source offsets: r8 = lane/8, c' = lane%8 ; this wave moves group sub = w>>1, dh = w&1")
e(f"s_lshr_b32 s{sT}, s{sW}, 1")
e(f"s_lshl_b32 s{sT}, s{sT}, 13")
e(f"s_and_b32 s{sT2}, s{sW}, 1")
e(f"s_lshl_b32 s{sT2}, s{sT2}, 7")
e(f"s_add_u32 s{sT}, s{sT}, s{sT2}")
e("v_lshlrev_b32 v8, 8, v6")
e(f"v_add_u32 v8, s{sT}, v8")
e("v_lshrrev_b32 v9, 1, v6")
e("v_xor_b32 v10, v9, v7")
e(f"v_lshl_add_u32 v{DK}, v10, 4, v8")
e("v_xor_b32 v10, 4, v10")
e("v_lshl_add_u32 v10, v10, 4, v8")
e(f"v_add_u32 v{DK+1}, 1024, v10")
e(f"v_add_u32 v{DK+2}, 2048, v{DK}")
e(f"v_add_u32 v{DK+3}, 3072, v10")
e(f"s_mul_i32 s{sT}, s2, 73728")
e(f"s_lshl_b32 s{sT2}, s2, 19")
e(f"s_lshl_b32 s{sFB}, s{sW}, 12")
e(f"s_mov_b32 s{SQ_+2}, 73728"); e(f"s_mov_b32 s{SQ_+3}, 0x20000")
e("s_waitcnt lgkmcnt(0)")
e(f"s_add_u32 s{SQ_}, s40, s{sT}"); e(f"s_addc_u32 s{SQ_+1}, s41, 0")
c("Q -> LDS (staged in the space of ring slots 2..4, same image as a K slot)")
def q_region(r):
    e(f"s_add_u32 m0, s{sFB}, {QBASE + r*16384}")
    e(f"s_mov_b32 s{sC}, {r*16384}")
    for rb in range(4):
        e(f"buffer_load_dwordx4 v{DK+rb}, {srd(SQ_)}, s{sC} offen offset:{rb*1024} {args.qnt} lds")
for r in range(4): q_region(r)
e(f"s_add_u32 s{SK_}, s42, s{sT2}"); e(f"s_addc_u32 s{SK_+1}, s43, 0"); e(f"s_mov_b32 s{SK_+3}, 0x20000")
e(f"s_add_u32 s{SV_}, s44, s{sT2}"); e(f"s_addc_u32 s{SV_+1}, s45, 0"); e(f"s_mov_b32 s{SV_+3}, 0x20000")
e(f"s_add_u32 s{SO_}, s46, s{sT}"); e(f"s_addc_u32 s{SO_+1}, s47, 0"); e(f"s_mov_b32 s{SO_+2}, 73728"); e(f"s_mov_b32 s{SO_+3}, 0x20000")
e("v_lshlrev_b32 v10, 1, v9")
e("v_xor_b32 v10, v10, v7")
e(f"v_lshl_add_u32 v{DV}, v10, 4, v8")
for rb in range(1, 4): e(f"v_add_u32 v{DV+rb}, {rb*1024}, v{DV}")
e("v_and_b32 v3, 15, v2")
e("v_lshrrev_b32 v4, 4, v2")
c("LDS read lane addresses")
e("v_lshlrev_b32 v8, 7, v3")
e("v_lshrrev_b32 v9, 1, v3")
e("v_xor_b32 v9, v9, v4")
e(f"v_lshl_add_u32 v{KA0}, v9, 4, v8")
e("v_xor_b32 v10, 4, v9")
e(f"v_lshl_add_u32 v{KA0+1}, v10, 4, v8")
e("v_lshrrev_b32 v8, 2, v2")
e("v_lshlrev_b32 v9, 7, v8")
e("v_and_b32 v10, 3, v2")
e("v_lshl_add_u32 v9, v10, 3, v9")
e("v_bfe_u32 v8, v8, 1, 2")
for x in range(4):
    e(f"v_xor_b32 v11, {x}, v8")
    e(f"v_lshl_add_u32 v{VA0+x}, v11, 5, v9")
c("output lane offset: q*256 + (g&1)*32 + (g>>1)*16")
e("v_lshlrev_b32 v5, 8, v3")
e("v_and_b32 v8, 1, v4")
e("v_lshl_add_u32 v5, v8, 5, v5")
e("v_lshrrev_b32 v8, 1, v4")
e("v_lshl_add_u32 v5, v8, 4, v5")
c("ones operand of the row-sum MFMA (rows 0,4,8,12), zero operand")
e("v_cmp_eq_u32 vcc, 0, v10")
e("v_mov_b32 v8, 0")
e("v_mov_b32 v9, 0x3f803f80")
e("v_cndmask_b32 v8, v8, v9, vcc")
for r in range(4): e(f"v_accvgpr_write_b32 a{ZER+r}, 0")
for r in range(4): e(f"v_accvgpr_write_b32 a{ONES+r}, v8")
e(f"s_mov_b32 s{sPASS}, 0")
if args.rot:
    e(f"s_mul_i32 s{sG0}, s2, {args.rot}")
    e(f"s_and_b32 s{sG0}, s{sG0}, 31")
    e(f"s_lshl_b32 s{sG0}, s{sG0}, 14")
else:
    e(f"s_mov_b32 s{sG0}, 0")
q_region(4)

def dma_group(kv):
    r = [f"s_add_u32 m0, s{sFB}, {kv*16384}" if kv else f"s_mov_b32 m0, s{sFB}"]
    for rb in range(4):
        v = (DV if kv else DK) + rb
        r.append(f"buffer_load_dwordx4 v{v}, {srd(SV_ if kv else SK_)}, s{sGOFF} offen offset:{rb*1024} {args.nt} lds")
    return r
def dma_advance():
    return [f"s_add_u32 s{sFB}, s{sFB}, {SLOT}",
            f"s_sub_u32 s{sT2}, s{sFB}, {RING}",
            f"s_cselect_b32 s{sFB}, s{sFB}, s{sT2}",
            f"s_add_u32 s{sGOFF}, s{sGOFF}, 16384",
            f"s_and_b32 s{sGOFF}, s{sGOFF}, 0x7ffff",
            f"s_sub_u32 s{sREM}, s{sREM}, 1",
            f"s_cselect_b32 s{SK_+2}, 0, s{SK_+2}",
            f"s_cselect_b32 s{SV_+2}, 0, s{SV_+2}"]
def emit_slot_dma():
    for kv in range(2):
        g = dma_group(kv)
        e(g[0]); e("s_nop 0")
        for s in g[1:]: e(s)
    for s in dma_advance(): e(s)

lab("L_restart")
e(f"s_mov_b32 s{SK_+2}, 0x80000"); e(f"s_mov_b32 s{SV_+2}, 0x80000")
e(f"s_lshl_b32 s{sFB}, s{sW}, 12")
e(f"s_mov_b32 s{sGOFF}, s{sG0}")
e(f"s_mov_b32 s{sREM}, 31")
c("position i works on 32-key subtile (w+1+i)&1 of the slot")
e(f"s_and_b32 s{sT}, s{sW}, 1")
e(f"s_lshl_b32 s{sSB[1]}, s{sT}, 13")
e(f"s_xor_b32 s{sSB[0]}, s{sSB[1]}, 8192")
c("zero AGPR state with 0*0 MFMAs")
for b in (VF(1,0), VF(1,4), LA):
    e(f"{MF32} {ar(b,16)}, {ar(ZER,4)}, {ar(ZER,4)}, 0")
e(f"{MF} {ar(LA+16,4)}, {ar(ZER,4)}, {ar(ZER,4)}, 0")
for x in range(4): e(f"v_mov_b32 v{LV+x}, 0")
for sl in range(2): emit_slot_dma()
e(f"s_cmp_lg_u32 s{sPASS}, 0")
e("s_cbranch_scc1 L_skipq")
e(f"s_lshl_b32 s{sT}, s{sW}, 14")
e(f"s_add_u32 s{sT}, s{sT}, {QBASE}")
e(f"s_lshr_b32 s{sT2}, s{sW}, 1")
e(f"s_lshl_b32 s{sT2}, s{sT2}, 11")
e(f"s_add_u32 s{sT2}, s{sT2}, {QBASE + 65536}")
for m in range(2):
    e(f"v_add_u32 v{KA+m}, s{sT}, v{KA0+m}")
    e(f"v_add_u32 v{VA+m}, s{sT2}, v{KA0+m}")
if args.stamp: e("s_memtime s[78:79]")
e("s_waitcnt vmcnt(16)")
e("s_barrier")
if args.stamp: e("s_memtime s[80:81]")
for x in range(5):
    for ks in range(4):
        if x < 4:
            e(f"ds_read_b128 {vr(16+16*x+4*ks,4)}, v{KA+ks%2} offset:{(x//2)*8192 + (x%2)*2048 + (ks//2)*4096}")
        else:
            e(f"ds_read_b128 {vr(16+16*x+4*ks,4)}, v{VA+ks%2} offset:{(ks//2)*4096}")
e(f"s_mov_b32 s{sC}, 0x3e0293ee")
e(f"s_mov_b32 s{sT}, 0xffff0000")
e("s_waitcnt lgkmcnt(0)")
e("s_barrier")
lab("L_skipq")
for sl in range(2, DEPTH): emit_slot_dma()
e(f"s_cmp_lg_u32 s{sPASS}, 0")
e("s_cbranch_scc1 L_skipq2")
c("scale Q by log2(e)/sqrt(128), round to bf16, park in AGPRs")
for r in range(80):
    v = 16 + r
    t0 = 6 + 2*(r % 4)
    e(f"v_lshlrev_b32 v{t0}, 16, v{v}")
    e(f"v_and_b32 v{t0+1}, s{sT}, v{v}")
    e(f"v_mul_f32 v{t0}, s{sC}, v{t0}")
    e(f"v_mul_f32 v{t0+1}, s{sC}, v{t0+1}")
    e(f"v_cvt_pk_bf16_f32 v{v}, v{t0}, v{t0+1}")
    if r: e(f"v_accvgpr_write_b32 a{QA+r-1}, v{v-1}")
e(f"v_accvgpr_write_b32 a{QA+79}, v{16+79}")
lab("L_skipq2")
c("zero O")
for b in range(16, 176, 16): e(f"{MF32} {vr(b,16)}, {ar(ZER,4)}, {ar(ZER,4)}, 0")
if args.stamp: e("s_memtime s[82:83]")
e(f"s_waitcnt vmcnt({8*(DEPTH-1)})")
e("s_barrier")
if args.stamp: e("s_memtime s[84:85]")
def kread(b, kt, ks, base=None): return f"ds_read_b128 {ar(KF(b,kt,ks),4)}, v{(KA if base is None else base)+ks%2} offset:{kt*2048 + (ks//2)*4096}"
def vread(b, dt, uu): return f"ds_read_b64_tr_b16 {ar(VF(b,dt)+2*uu,2)}, v{VA+dt%4} offset:{16384 + (dt//4)*4096 + uu*2048}"
kr = lambda b: [kread(b, kt, ks) for kt in range(2) for ks in range(4)]
vrd = lambda b: [vread(b, dt, uu) for dt in range(8) for uu in range(2)]
for ks in range(4): e(kread(1, 0, ks, KA0))
c("position-0 fragments")
for m in range(2): e(f"v_add_u32 v{KA+m}, s{sSB[0]}, v{KA0+m}")
for x in range(4): e(f"v_add_u32 v{VA+x}, s{sSB[0]}, v{VA0+x}")
for s_ in kr(0) + vrd(0)[:7]: e(s_)
e(f"s_cmp_lg_u32 s{sPASS}, 0")
e("s_cbranch_scc1 L_skipm")
c("reference max of each row from the first 16 keys")
e("s_waitcnt lgkmcnt(15)")
for x in range(5):
    for ks in range(4):
        cc = "0" if ks == 0 else vr(SV+4*x,4)
        e(f"{MF} {vr(SV+4*x,4)}, {ar(KF(1,0,ks),4)}, {ar(QA+16*x+4*ks,4)}, {cc}")
e("s_nop 3")
MX = [6, 7, 8, 9, 10]; TX = [11, 12, 13, 14, 15]
for x in range(5): e(f"v_max3_f32 v{MX[x]}, v{SV+4*x}, v{SV+4*x+1}, v{SV+4*x+2}")
for x in range(5): e(f"v_max_f32 v{MX[x]}, v{MX[x]}, v{SV+4*x+3}")
def cross_and_cinit():
    for sw in ("v_permlane16_swap_b32", "v_permlane32_swap_b32"):
        for x in range(5): e(f"v_mov_b32 v{TX[x]}, v{MX[x]}")
        e("s_nop 0")
        for x in range(5): e(f"{sw} v{MX[x]}, v{TX[x]}")
        e("s_nop 0")
        for x in range(5): e(f"v_max_f32 v{MX[x]}, v{MX[x]}, v{TX[x]}")
    for x in range(5):
        for r in range(4): e(f"v_sub_f32 v{CI+4*x+r}, 0, v{MX[x]}")
cross_and_cinit()
lab("L_skipm")
for s_ in vrd(0)[7:]: e(s_)

hus = [(0,0),(1,0),(2,0),(3,0),(0,1),(1,1),(2,1),(3,1),(4,1)]
plen = [16 + (1 if ((u - 1) % 9) in MSUM else 0) for u in range(9)]
P0 = [sum(plen[:u]) for u in range(10)]
NG = P0[9]
def gp(u, k):
    return (P0[u % 9] + k) % NG
mf = [None]*NG
for u, (x, p) in enumerate(hus):
    sb = SV + 8*(u % 3); pb = PV + 4*(u % 3)
    for kt in range(2):
        for ks in range(4):
            cc = vr(CI+4*x,4) if ks == 0 else vr(sb+4*kt,4)
            mf[gp(u, 4*kt+ks)] = f"{MF} {vr(sb+4*kt,4)}, {ar(KF(p,kt,ks),4)}, {ar(QA+16*x+4*ks,4)}, {cc}"
    for dt in range(8):
        mf[gp(u+1, 8+dt)] = f"{MF} {vr(O(x,dt),4)}, {ar(VF(p,dt),4)}, {vr(pb,4)}, {vr(O(x,dt),4)}"
    if u in MSUM:
        mf[gp(u+1, 16)] = f"{MF} {ar(LA+4*x,4)}, {ar(ONES,4)}, {vr(pb,4)}, {ar(LA+4*x,4)}"
assert all(mf)
pre = [[] for _ in range(NG)]
val = [[] for _ in range(NG)]
cap = [2]*NG
expg = {}
for u, (x, p) in enumerate(hus):
    sb = SV + 8*(u % 3); pb = PV + 4*(u % 3)
    eg_ = [gp(u,7), gp(u,9), gp(u,11), gp(u,13), gp(u,15), gp(u+1,0), gp(u+1,2), gp(u+1,4)]
    cg_ = [gp(u,10), gp(u,14), gp(u+1,1), gp(u+1,5)]
    for el in range(8):
        val[eg_[el]].append(f"v_exp_f32 v{sb+el}, v{sb+el}"); cap[eg_[el]] -= 2; expg[(u, el)] = eg_[el]
    for k_ in range(4):
        val[cg_[k_]].append(f"v_cvt_pk_bf16_f32 v{pb+k_}, v{sb+2*k_}, v{sb+2*k_+1}"); cap[cg_[k_]] -= 1
assert min(cap) >= 0
BAR = gp(3, 14)
items = []
def item(r, d, kind, text, chain=None): items.append(dict(r=r, d=d, kind=kind, text=text, chain=chain))
for s_ in kr(1): item(gp(0,1), gp(2,0), 'lds', s_, 'k1')
for n, s_ in enumerate(vrd(1)): item(gp(0, 8 + n//2), BAR - 6, 'lds', s_, 'v1')
for x in range(4): item(0, gp(0,8), 'valu', f"v_add_u32 v{VA+x}, s{sSB[1]}, v{VA0+x}", 'va1')
XG = [g for g in range(NG) if cap[g] == 2]
if args.dmode == "g4":
    DG = [gp(4,3), gp(4,6)]
    for g in DG: cap[g] = 0
elif args.dmode == "g2":
    DG = [gp(4,3), gp(4,12), gp(5,6), gp(5,16)]
    for g in DG: cap[g] = 0
else:
    step, cost = int(args.dmode[1:args.dmode.index("c")]), int(args.dmode[args.dmode.index("c")+1:])
    DG = []; g = BAR + 3
    while len(DG) < 8:
        g = min(x for x in XG if x >= g); DG.append(g); cap[g] -= cost; g += step
    DMAG = set(DG)
for m in range(2): item(gp(2,1), BAR, 'valu', f"v_add_u32 v{KA+m}, s{sSB[0]}, v{KA0+m}", 'ka0')
for s_ in kr(0): item(BAR + 1, gp(6,8), 'lds', s_, 'k0')
for x in range(4): item(BAR - 5, gp(4,14), 'valu', f"v_add_u32 v{VA+x}, s{sSB[0]}, v{VA0+x}", 'va0')
for n, s_ in enumerate(vrd(0)): item(gp(4,15) + 1, NG - 7, 'lds', s_, 'v0')
for m in range(2): item(gp(6,9), NG - 1, 'valu', f"v_add_u32 v{KA+m}, s{sSB[1]}, v{KA0+m}", 'ka1')
for u, (x, p) in enumerate(hus):
    if u in MSUM: continue
    for el in range(8):
        r = expg[(u, el)] + 1
        item(r, min(r + 20, NG - 1), 'valu', f"v_add_f32 v{LV+x}, v{LV+x}, v{SV+8*(u%3)+el}", f"sum{u}")
done = set()
for g in range(NG):
    while cap[g] > 0:
        cand = []
        seen = set()
        for i, it in enumerate(items):
            if i in done: continue
            if it['chain'] in seen: continue
            seen.add(it['chain'])
            if it['r'] > g: continue
            if it['kind'] == 'lds' and (g == BAR or g in DG or len([x for x in pre[g]]) >= 2): continue
            cand.append((it['d'], i))
        if not cand: break
        _, i = min(cand)
        it = items[i]; done.add(i)
        assert g <= it['d'], ("deadline miss", it, g)
        (pre if it['kind'] == 'lds' else val)[g].append(it['text']); cap[g] -= 1
        it['g'] = g
assert len(done) == len(items), [it for i, it in enumerate(items) if i not in done]
def gl(ch): return [it['g'] for it in items if it['chain'] == ch]
assert max(gl('va1')) < min(gl('v1')) and max(gl('ka0')) < min(gl('k0')) and max(gl('va0')) < min(gl('v0'))
assert max(gl('k1')) < min(gl('ka0')) and max(gl('v1')) < min(gl('va0')) and max(gl('k0')) < min(gl('ka1'))
def free_slot(g0, n, g1=None):
    out = []; g = g0
    while len(out) < n:
        if not pre[g % NG] and (g % NG) not in DG and (g % NG) != BAR: out.append(g % NG)
        g += 1
    if g1 is not None: assert out[-1] <= g1, (out, g1)
    return out
def sb_adv(i):
    return [f"s_add_u32 s{sSB[i]}, s{sSB[i]}, {SLOT}", f"s_sub_u32 s{sT}, s{sSB[i]}, {RING}", f"s_cselect_b32 s{sSB[i]}, s{sSB[i]}, s{sT}"]
sl = free_slot(max(gl('va1')) + 1, 6, min(gl('ka0')) - 1)
for g, s_ in zip(sl, sb_adv(0) + sb_adv(1)): pre[g].append(s_)
w = [g for g in range(max(gl('v1')) + 1, BAR) if not pre[g]]
pre[w[-2]].append(f"s_waitcnt vmcnt({8*(DEPTH-2)})" if not args.nodma else "s_nop 0")
pre[w[-1]].append("s_waitcnt lgkmcnt(0)")
pre[BAR].append("s_barrier")
d0 = dma_group(0); d1 = dma_group(1)
per = 8 // len(DG)
dl = d0[1:] + d1[1:]
pre[free_slot(BAR + 1, 1, DG[0] - 1)[0]].append(d0[0])
pre[free_slot(DG[len(DG)//2 - 1] + 1, 1, DG[len(DG)//2] - 1)[0]].append(d1[0])
if not args.nodma:
    for i, g in enumerate(DG): pre[g] += dl[per*i:per*i+per]
for g, s_ in zip(free_slot(DG[-1] + 1, 8), dma_advance()): pre[g].append(s_)
w = [g for g in range(max(gl('v0')) + 1, NG) if not pre[g]]
pre[w[-3]].append(f"s_sub_u32 s{sCNT}, s{sCNT}, 1")
pre[w[-2]].append(f"s_cmp_lg_u32 s{sCNT}, 0")
pre[w[-1]].append("s_waitcnt lgkmcnt(0)")
for u in range(9):
    for (m_last, eg_) in ((3, 7), (7, 15)):
        gs = [gp(u, k) for k in range(m_last, eg_)]
        cnt = lambda: sum(len(pre[g]) + len(val[g]) for g in gs) + (eg_ - m_last) + len(pre[gp(u, eg_)])
        for g in gs + [gp(u, eg_)]:
            if cnt() >= 8: break
            if not pre[g]: pre[g].append("s_nop 0")
        assert cnt() >= 8
body = []
for g in range(NG):
    body.append(mf[g]); body += pre[g]; body += val[g]
if args.report:
    for g in range(NG):
        u = max(i for i in range(9) if P0[i] <= g)
        print(g, u, g - P0[u], cap[g], " | ".join(x.split()[0] for x in pre[g]), "||", " | ".join(x.split()[0] for x in val[g]), file=sys.stderr)

def regs(tok):
    m = re.match(r"([va])\[(\d+):(\d+)\]", tok)
    if m: return {(m.group(1), i) for i in range(int(m.group(2)), int(m.group(3))+1)}
    m = re.match(r"([va])(\d+)$", tok)
    if m: return {(m.group(1), int(m.group(2)))}
    return set()
def parse(ins):
    op, _, rest = ins.partition(" ")
    toks = [t.strip() for t in rest.split(",")]
    toks = [t.split()[0] if t else t for t in toks]
    return op, toks
def check(body):
    n = len(body); P = [parse(x) for x in body]
    for i, (op, t) in enumerate(P):
        for d in range(1, 12):
            op2, t2 = P[(i + d) % n]
            if op.startswith("v_mfma") and d <= 8:
                D = regs(t[0])
                if op2.startswith("v_") and not op2.startswith("v_mfma"):
                    rw = set().union(*[regs(x) for x in t2])
                    assert not (D & rw), ("mfma->valu", body[i], body[(i+d) % n], d)
                if op2.startswith("v_mfma"):
                    assert not (D & (regs(t2[1]) | regs(t2[2]))), ("mfma->mfmaAB", body[i], body[(i+d)%n])
                    if D & regs(t2[3]): assert regs(t2[3]) == D or d > 6
                if op2.startswith("ds_") : assert not (D & regs(t2[0]))
            if op.startswith("v_") and not op.startswith("v_mfma") and d <= 2 and op2.startswith("v_mfma"):
                assert not (regs(t[0]) & (regs(t2[1]) | regs(t2[2]) | regs(t2[3]))), ("valu->mfma", body[i], body[(i+d)%n], d)
            if op.startswith("v_exp") and d == 1 and op2.startswith("v_") and not op2.startswith("v_exp"):
                assert not (regs(t[0]) & set().union(*[regs(x) for x in t2[1:]])), ("trans", body[i], body[(i+d)%n])
            if op.startswith("v_mfma") and d <= 3 and op2.startswith("v_") and not op2.startswith("v_mfma"):
                assert not (regs(t[3]) & regs(t2[0])), ("srcC war", body[i], body[(i+d)%n])
            if t and t[0] == "m0" and d == 1: assert not op2.startswith("buffer_load"), "m0"
    last = None
    for ins in body + body:
        op = ins.split()[0]
        if op == "s_cselect_b32": assert last == "s_sub_u32", (ins, last)
        elif op in ("s_add_u32", "s_sub_u32", "s_and_b32", "s_cmp_lg_u32", "s_xor_b32", "s_lshl_b32"): last = op
check(body)
lastscc = [x.split()[0] for x in body if x.split()[0] in ("s_add_u32", "s_sub_u32", "s_and_b32", "s_cmp_lg_u32")][-1]
assert lastscc == "s_cmp_lg_u32"

def isize(ins):
    op, t = parse(ins)
    if op.startswith(("v_mfma", "ds_", "buffer_", "v_cvt_pk")): return 8
    if op.endswith("_e64"): return 8
    if op.startswith("v_"): return 4
    if op in ("s_nop", "s_waitcnt", "s_barrier"): return 4
    for x in t[1:]:
        if re.match(r"^(0x[0-9a-f]+|\d+)$", x) and int(x, 0) > 64: return 8
    return 4
def flexible(ins): return ins.split()[0] in ("v_exp_f32", "v_add_f32", "v_add_u32")
def align(body):
    out = []; off = 0; bad = 0
    for i, ins in enumerate(body):
        if flexible(ins) and off % 8 == 0:
            nxt = body[i+1] if i + 1 < len(body) else "s_nop 0"
            if isize(nxt) == 8 and not flexible(nxt):
                op, _, rest = ins.partition(" "); ins = f"{op}_e64 {rest}"
        if isize(ins) == 8 and off % 8: bad += 1
        out.append(ins); off += isize(ins)
    return out, bad, off
if args.align:
    body, bad, nbytes = align(body)
    if args.report: print("misaligned 8-byte instrs:", bad, "bytes:", nbytes, "NG", NG, file=sys.stderr)

c("K(1) address, neutral state for the 'previous' half-unit 8")
for m in range(2): e(f"v_add_u32 v{KA+m}, s{sSB[1]}, v{KA0+m}")
done_el = 5; done_cv = 2
sb8 = SV + 8*(8 % 3); pb8 = PV + 4*(8 % 3)
e("v_mov_b32 v6, 0xf149f2ca")
for el in range(8): e(f"v_mov_b32 v{sb8+el}, {'0' if el < done_el else 'v6'}")
for r in range(4): e(f"v_mov_b32 v{pb8+r}, 0")
e(f"s_mov_b32 s{sCNT}, 32")
if args.stamp:
    e("s_memtime s[66:67]"); e("s_memrealtime s[74:75]")
e("s_waitcnt lgkmcnt(0)")
L.append(".p2align 6")
lab("L_loop")
abl = args.abl.split(",") if args.abl else []
def dropped(s):
    op = s.split()[0]
    if "lds" in abl and op.startswith("ds_read"): return True
    if "exp" in abl and op.startswith("v_exp"): return True
    if "cvt" in abl and op.startswith("v_cvt"): return True
    if "add" in abl and op.startswith("v_add_f32"): return True
    if "mfma" in abl and op.startswith("v_mfma"): return True
    return False
for s in body:
    if dropped(s):
        e("s_nop 0")
        if isize(s) == 8 or s.startswith("v_exp"): e("s_nop 0")
    else: e(s)
e("s_cbranch_scc1 L_loop")
if args.stamp:
    e("s_memtime s[68:69]"); e("s_memrealtime s[76:77]")
c("drain half-unit 8 (shared tile)")
for el in range(done_el, 8): e(f"v_exp_f32 v{sb8+el}, v{sb8+el}")
e("v_lshlrev_b32 v12, 4, v2")
for k_ in range(done_cv, 4): e(f"v_cvt_pk_bf16_f32 v{pb8+k_}, v{sb8+2*k_}, v{sb8+2*k_+1}")
e("v_lshlrev_b32 v13, 2, v2")
e("s_nop 0")
e(f"{MF} {ar(LA+16,4)}, {ar(ONES,4)}, {vr(pb8,4)}, {ar(LA+16,4)}")
for dt in range(8):
    e(f"{MF} {vr(O(4,dt),4)}, {ar(VF(1,dt),4)}, {vr(pb8,4)}, {vr(O(4,dt),4)}")
c("row sums -> v6..v10 : MFMA part + lane-partial VALU part reduced over the four lane groups")
for sw in ("v_permlane16_swap_b32", "v_permlane32_swap_b32"):
    for x in range(4): e(f"v_mov_b32 v{6+x}, v{LV+x}")
    e("s_nop 0")
    for x in range(4): e(f"{sw} v{LV+x}, v{6+x}")
    e("s_nop 0")
    for x in range(4): e(f"v_add_f32 v{LV+x}, v{LV+x}, v{6+x}")
for x in range(5): e(f"v_accvgpr_read_b32 v{6+x}, a{LA+4*x}")
for x in range(4): e(f"v_add_f32 v{6+x}, v{6+x}, v{LV+x}")
e("v_add_f32 v11, v6, v7"); e("v_add_f32 v14, v8, v9"); e("v_add_f32 v11, v11, v10"); e("v_add_f32 v11, v11, v14")
for x in range(4): e(f"v_rcp_f32 v{6+x}, v{6+x}")
e(f"s_lshl_b32 s{sT}, s{sW}, 12")
e(f"v_add_u32 v14, s{sT}, v12")
e(f"s_xor_b32 s{sT}, s{sT}, 4096")
e(f"v_add_u32 v12, s{sT}, v12")
e(f"s_lshl_b32 s{sT}, s{sW}, 9")
e(f"v_add_u32 v15, s{sT}, v13")
e("s_waitcnt vmcnt(0) lgkmcnt(0)")
e("s_barrier")
c("even wave keeps d-tiles 0..3 of the shared tile and hands over 4..7; odd wave the reverse")
e(f"s_and_b32 s{sT}, s{sW}, 1")
e(f"s_cmp_eq_u32 s{sT}, 0")
e("s_cbranch_scc1 L_even")
for i in range(4): e(f"ds_write_b128 v14, {vr(O(4,i),4)} offset:{i*1024}")
e("s_nop 3")
for i in range(16): e(f"v_mov_b32 v{O(4,0)+i}, v{O(4,4)+i}")
e("s_branch L_wdone")
lab("L_even")
for i in range(4): e(f"ds_write_b128 v14, {vr(O(4,4+i),4)} offset:{i*1024}")
lab("L_wdone")
e(f"ds_write_b32 v15, v10 offset:16384")
e(f"ds_write_b32 v15, v11 offset:16640")
def store_tile(base, ndt, inv, soff, tmp0):
    for dp in range(ndt // 2):
        t = tmp0 + 4*(dp % 4)
        for k_ in range(8):
            e(f"v_mul_f32 v{base+8*dp+k_}, v{inv}, v{base+8*dp+k_}")
        for k_ in range(4):
            e(f"v_cvt_pk_bf16_f32 v{t+k_}, v{base+8*dp+2*k_}, v{base+8*dp+2*k_+1}")
        e("s_nop 1")
        e(f"v_permlane16_swap_b32 v{t}, v{t+2}")
        e(f"v_permlane16_swap_b32 v{t+1}, v{t+3}")
        e(f"buffer_store_dwordx4 {vr(t,4)}, v5, {srd(SO_)}, s{soff} offen offset:{dp*64} {args.ont}")
TMP = SV
e(f"s_lshl_b32 s{sT}, s{sW}, 14")
for x in range(2):
    store_tile(O(x,0), 8, 6+x, sT, TMP)
    e(f"s_add_u32 s{sT}, s{sT}, 4096")
e("s_waitcnt lgkmcnt(0)")
e("s_barrier")
for i in range(4): e(f"ds_read_b128 {vr(O(4,4+i),4)}, v12 offset:{i*1024}")
e(f"s_xor_b32 s{sT2}, s{sW}, 1")
e(f"s_lshl_b32 s{sT2}, s{sT2}, 9")
e(f"v_add_u32 v15, s{sT2}, v13")
e("ds_read_b32 v14, v15 offset:16384")
for ww in range(4): e(f"ds_read_b32 v{PV+ww}, v13 offset:{16640+ww*512}")
for x in range(2, 4):
    store_tile(O(x,0), 8, 6+x, sT, TMP)
    e(f"s_add_u32 s{sT}, s{sT}, 4096")
e("s_waitcnt lgkmcnt(0)")
e(f"v_add_f32 v{PV}, v{PV}, v{PV+1}"); e(f"v_add_f32 v{PV+2}, v{PV+2}, v{PV+3}"); e(f"v_add_f32 v{PV}, v{PV}, v{PV+2}")
e("v_add_f32 v10, v10, v14")
e(f"v_mov_b32 v{PV+1}, {'0' if args.forcefb else '0x4e800000'}")
e(f"v_cmp_nlt_f32 vcc, v{PV}, v{PV+1}")
e("v_rcp_f32 v10, v10")
e(f"s_cmp_lg_u32 s{sPASS}, 0")
e("s_cbranch_scc1 L_nofb")
e("s_cbranch_vccnz L_fallback")
lab("L_nofb")
for r in range(16): e(f"v_add_f32 v{O(4,0)+r}, v{O(4,0)+r}, v{O(4,4)+r}")
e(f"s_lshr_b32 s{sT}, s{sW}, 1")
e(f"s_lshl_b32 s{sT}, s{sT}, 12")
e(f"s_and_b32 s{sT2}, s{sW}, 1")
e(f"s_lshl_b32 s{sT2}, s{sT2}, 7")
e(f"s_add_u32 s{sT}, s{sT}, s{sT2}")
e(f"s_add_u32 s{sT}, s{sT}, 65536")
store_tile(O(4,0), 4, 10, sT, TMP)
if args.stamp:
    e("s_memtime s[70:71]")
    e("s_memrealtime s[72:73]")
    e("s_waitcnt lgkmcnt(0)")
    e("s_cmp_lg_u32 s2, 5")
    e("s_cbranch_scc1 L_end")
    e("s_mov_b32 s56, s60"); e("s_mov_b32 s57, s61"); e("s_mov_b32 s58, 256"); e("s_mov_b32 s59, 0x20000")
    for a, b in ((66,62),(68,62),(70,62),(74,64),(76,64),(72,64),(78,62),(80,62),(82,62),(84,62)): e(f"s_sub_u32 s{a}, s{a}, s{b}")
    for i, a in enumerate((80,84,66,68,70,74,76,72)): e(f"v_mov_b32 v{8+i}, s{a}")
    e(f"s_lshl_b32 s{sT}, s{sW}, 5")
    e(f"v_mov_b32 v6, s{sT}")
    e("buffer_store_dwordx4 v[8:11], v6, s[56:59], 0 offen")
    e("buffer_store_dwordx4 v[12:15], v6, s[56:59], 0 offen offset:16")
lab("L_end")
e("s_endpgm")

lab("L_fallback")
c("exact row maxima over all keys, then run the main pass again")
e(f"s_mov_b32 s{SK_+2}, 0x80000")
e(f"s_mov_b32 s{sPASS}, 1")
e(f"s_mov_b32 s{sT}, 0")
e(f"v_lshlrev_b32 v{PV}, 8, v3")
e(f"v_lshl_add_u32 v{PV}, v4, 4, v{PV}")
for x in range(5): e(f"v_mov_b32 v{MX[x]}, 0xff800000")
lab("L_fbloop")
e(f"s_add_u32 s{sT2}, s{sT}, 4096")
for kt in range(2):
    for ks in range(4):
        e(f"buffer_load_dwordx4 {ar(KF(1,kt,ks),4)}, v{PV}, {srd(SK_)}, s{sT2 if kt else sT} offen offset:{ks*64}")
e("s_waitcnt vmcnt(0)")
for x in range(5):
    for kt in range(2):
        for ks in range(4):
            sreg = 16 + 8*x + 4*kt
            cc = "0" if ks == 0 else vr(sreg,4)
            e(f"{MF} {vr(sreg,4)}, {ar(KF(1,kt,ks),4)}, {ar(QA+16*x+4*ks,4)}, {cc}")
e("s_nop 7")
for x in range(5):
    for i in range(0, 8, 2):
        e(f"v_max3_f32 v{MX[x]}, v{MX[x]}, v{16+8*x+i}, v{16+8*x+i+1}")
e(f"s_add_u32 s{sT}, s{sT}, 8192")
e(f"s_cmp_lt_u32 s{sT}, 0x80000")
e("s_cbranch_scc1 L_fbloop")
cross_and_cinit()
e("s_barrier")
e("s_branch L_restart")
lab("L_codeend")

L.append('.section .rodata,"a"\n.p2align 6')
L.append(f".amdhsa_kernel {KN}")
L.append("  .amdhsa_next_free_vgpr 512\n  .amdhsa_next_free_sgpr 102\n  .amdhsa_accum_offset 256\n  .amdhsa_group_segment_fixed_size 0\n  .amdhsa_kernarg_size 48\n  .amdhsa_user_sgpr_count 2\n  .amdhsa_user_sgpr_kernarg_segment_ptr 1\n  .amdhsa_system_sgpr_workgroup_id_x 1\n.end_amdhsa_kernel")
print("\n".join(L))
```

```python
import sys, argparse, re
ap = argparse.ArgumentParser()
ap.add_argument("--nt", default="nt")
ap.add_argument("--qnt", default="nt")
ap.add_argument("--ont", default="")
ap.add_argument("--rot", type=int, default=0)
ap.add_argument("--stamp", type=int, default=0)
ap.add_argument("--forcefb", type=int, default=0)
ap.add_argument("--report", type=int, default=0)
ap.add_argument("--msum", default="8,2,5")
ap.add_argument("--dstep", type=int, default=5)
ap.add_argument("--bar", default="3,14")
ap.add_argument("--otouch", type=int, default=0)
ap.add_argument("--full", type=int, default=0)
ap.add_argument("--late", type=int, default=0)
args = ap.parse_args()
MSUM = set(int(x) for x in args.msum.split(","))
assert 8 in MSUM

KN = "standalone__mha_softmax__near_ridge_kernel"
L = []
def e(s): L.append("    " + s)
def lab(s): L.append(s + ":")
def c(s): L.append("    ; " + s)

def O(x, dt): return 16 + 32*x + 4*dt
SV = 176; PV = 200; CI = 212
def KA(p, m): return 232 + 2*p + m
def VA(p, x): return 236 + 4*p + x
DK = 244; DV = 248; LV = 252
QA = 0
def KF(b, kt, ks): return 80 + 32*b + 16*kt + 4*ks
def VF(b, dt): return 144 + 32*b + 4*dt
LA = 208; ONES = 228; ZER = 232
SK_, SV_, SQ_, SO_ = 8, 12, 16, 20
sW = 24; sGOFF = 26; sFB = 27; sREM = 28; sT = 34; sCNT = 35; sPASS = 36; sC = 37; sT2 = 38; sG0 = 39
sQL = 50; sQG = 51; sQC = 52
SLOT = 32768; QBASE = 65536; LDS = QBASE + 73728
def srd(b): return f"s[{b}:{b+3}]"
def vr(b, n): return f"v[{b}:{b+n-1}]"
def ar(b, n): return f"a[{b}:{b+n-1}]"
MF = "v_mfma_f32_16x16x32_bf16"
MF32 = "v_mfma_f32_32x32x16_bf16"
def stamp(r):
    if args.stamp and args.stamp != 5: e(f"s_memtime s[{r}:{r+1}]")

hdr = open("standalone__mha_softmax__near_ridge.s.ref").read().split("\n")
for ln in hdr:
    if ln.startswith("; @launch"): break
    if ln.startswith(";"): L.append(ln)
L.append(f"; @launch grid=(256,1,1) block=(256,1,1) lds={LDS}")
L.append('.amdgcn_target "amdgcn-amd-amdhsa--gfx950"')
L.append(f".text\n.globl {KN}\n.p2align 8\n.type {KN},@function")
lab(KN)
e("s_cmp_ge_u32 s2, 256")
e("s_cbranch_scc1 L_end")
e("s_load_dwordx8 s[40:47], s[0:1], 0")
if args.stamp:
    e("s_load_dwordx2 s[60:61], s[0:1], 32")
    e("s_memtime s[62:63]")
    e("s_memrealtime s[64:65]")
c("pull this kernel's code into L2 so that instruction fetch does not go to HBM line by line")
e("s_getpc_b64 s[48:49]")
lab("L_pc")
e("v_lshlrev_b32 v1, 6, v0")
e("v_min_u32 v1, L_codeend-L_pc-4, v1")
e(f"global_load_dword v{SV}, v1, s[48:49]")
e("v_lshrrev_b32 v1, 6, v0")
e("v_and_b32 v2, 63, v0")
e(f"v_readfirstlane_b32 s{sW}, v1")
e("v_lshrrev_b32 v6, 3, v2")
e("v_and_b32 v7, 7, v2")
c("DMA per-lane source offsets; for K/V this wave moves group sub = w>>1, dh = w&1 of every 64-key slot")
e("v_lshrrev_b32 v9, 1, v6")
e("v_lshlrev_b32 v8, 8, v6")
e("v_xor_b32 v10, v9, v7")
e("v_lshl_add_u32 v12, v10, 4, v8")
e("v_xor_b32 v10, 4, v10")
e("v_lshl_add_u32 v13, v10, 4, v8")
e("v_add_u32 v13, 2048, v13")
e(f"s_lshr_b32 s{sT}, s{sW}, 1")
e(f"s_lshl_b32 s{sT}, s{sT}, 13")
e(f"s_and_b32 s{sT2}, s{sW}, 1")
e(f"s_lshl_b32 s{sT2}, s{sT2}, 7")
e(f"s_add_u32 s{sT}, s{sT}, s{sT2}")
e(f"v_add_u32 v{DK}, s{sT}, v12")
e(f"v_add_u32 v{DK+1}, s{sT}, v13")
e(f"v_subrev_u32 v{DK+1}, 1024, v{DK+1}")
e(f"v_add_u32 v{DK+2}, 2048, v{DK}")
e(f"v_add_u32 v{DK+3}, 2048, v{DK+1}")
e("v_lshlrev_b32 v10, 1, v9")
e("v_xor_b32 v10, v10, v7")
e("v_lshl_add_u32 v10, v10, 4, v8")
e(f"v_add_u32 v{DV}, s{sT}, v10")
for rb in range(1, 4): e(f"v_add_u32 v{DV+rb}, {rb*1024}, v{DV}")
e(f"s_mul_i32 s{sT}, s2, 73728")
e(f"s_lshl_b32 s{sT2}, s2, 19")
e(f"s_mov_b32 s{SQ_+2}, 73728"); e(f"s_mov_b32 s{SQ_+3}, 0x20000")
e(f"s_mov_b32 s{SK_+3}, 0x20000"); e(f"s_mov_b32 s{SV_+3}, 0x20000")
e(f"s_mov_b32 s{SO_+2}, 73728"); e(f"s_mov_b32 s{SO_+3}, 0x20000")
e(f"s_mov_b32 s{sPASS}, 0")
e(f"s_lshl_b32 s{sFB}, s{sW}, 12")
if args.rot:
    e(f"s_mul_i32 s{sG0}, s2, {args.rot}")
    e(f"s_and_b32 s{sG0}, s{sG0}, 31")
    e(f"s_lshl_b32 s{sG0}, s{sG0}, 14")
else:
    e(f"s_mov_b32 s{sG0}, 0")
e("s_waitcnt lgkmcnt(0)")
stamp(86)
e(f"s_add_u32 s{SK_}, s42, s{sT2}"); e(f"s_addc_u32 s{SK_+1}, s43, 0")
e(f"s_add_u32 s{SQ_}, s40, s{sT}"); e(f"s_addc_u32 s{SQ_+1}, s41, 0")
e(f"s_add_u32 s{SV_}, s44, s{sT2}"); e(f"s_addc_u32 s{SV_+1}, s45, 0")
e(f"s_add_u32 s{SO_}, s46, s{sT}"); e(f"s_addc_u32 s{SO_+1}, s47, 0")

def dma_group(pos, kv):
    off = pos*SLOT + kv*16384
    r = [f"s_add_u32 m0, s{sFB}, {off}" if off else f"s_mov_b32 m0, s{sFB}"]
    for rb in range(4):
        v = (DV if kv else DK) + rb
        r.append(f"buffer_load_dwordx4 v{v}, {srd(SV_ if kv else SK_)}, s{sGOFF} offen offset:{rb*1024} {args.nt} lds")
    return r
def dma_advance():
    return [f"s_add_u32 s{sGOFF}, s{sGOFF}, 16384",
            f"s_and_b32 s{sGOFF}, s{sGOFF}, 0x7ffff",
            f"s_sub_u32 s{sREM}, s{sREM}, 1",
            f"s_cselect_b32 s{SK_+2}, 0, s{SK_+2}",
            f"s_cselect_b32 s{SV_+2}, 0, s{SV_+2}"]
def emit_group(pos, kv):
    g = dma_group(pos, kv)
    e(g[0]); e("s_nop 0")
    for s in g[1:]: e(s)
def emit_adv():
    for s in dma_advance(): e(s)

lab("L_restart")
e(f"s_mov_b32 s{SK_+2}, 0x80000"); e(f"s_mov_b32 s{SV_+2}, 0x80000")
e(f"s_mov_b32 s{sGOFF}, s{sG0}")
e(f"s_mov_b32 s{sREM}, 31")
emit_group(0, 0)
e(f"s_cmp_lg_u32 s{sPASS}, 0")
e("s_cbranch_scc1 L_skipq")
c("Q -> LDS; 4 KB per 16-row tile: [dh][8-row half][1 KB]")
e(f"s_lshl_b32 s{sQG}, s{sW}, 14")
e(f"s_add_u32 s{sQL}, s{sQG}, {QBASE}")
e(f"s_lshr_b32 s{sC}, s{sW}, 1")
e(f"s_lshl_b32 s{sC}, s{sC}, 12")
e(f"s_add_u32 s{sC}, s{sC}, 65536")
e(f"s_add_u32 s{sQC}, s{sC}, {QBASE}")
e(f"s_and_b32 s{sT}, s{sW}, 1")
e(f"s_lshl_b32 s{sT2}, s{sT}, 7")
e(f"s_add_u32 s{sC}, s{sC}, s{sT2}")
e(f"s_lshl_b32 s{sT}, s{sT}, 11")
e(f"s_add_u32 m0, s{sQC}, s{sT}")
e("s_nop 0")
e(f"buffer_load_dwordx4 v12, {srd(SQ_)}, s{sC} offen {args.qnt} lds")
e(f"s_add_u32 m0, m0, 1024")
e("s_nop 0")
e(f"buffer_load_dwordx4 v13, {srd(SQ_)}, s{sC} offen {args.qnt} lds")
def q_dma(x, qd):
    for dh in range(2):
        e(f"s_add_u32 s{sT2}, s{sQG}, {x*4096 + dh*128}")
        for j in range(2):
            e(f"s_add_u32 m0, s{sQL}, {x*4096 + dh*2048 + j*1024}")
            e("s_nop 0")
            e(f"buffer_load_dwordx4 v{qd+j}, {srd(SQ_)}, s{sT2} offen {args.qnt} lds")
q_dma(0, 12)
stamp(88)
c("(register set-up while the first loads fly)")
QD = 228; QR = 224; K0R = 222
e(f"v_mov_b32 v{QD}, v12"); e(f"v_mov_b32 v{QD+1}, v13")
e("v_and_b32 v3, 15, v2")
e("v_lshrrev_b32 v4, 4, v2")
e("v_lshlrev_b32 v8, 7, v3")
e("v_lshrrev_b32 v9, 1, v3")
e("v_xor_b32 v9, v9, v4")
e(f"v_lshl_add_u32 v{K0R}, v9, 4, v8")
e("v_xor_b32 v10, 4, v9")
e(f"v_lshl_add_u32 v{K0R+1}, v10, 4, v8")
c("position p works on 32-key subtile (w+1+p)&1 of the slot")
e(f"s_and_b32 s{sT}, s{sW}, 1")
e(f"s_lshl_b32 s{sT}, s{sT}, 13")
e(f"s_xor_b32 s{sT2}, s{sT}, 8192")
for m in range(2):
    e(f"v_add_u32 v{KA(0,m)}, s{sT2}, v{K0R+m}")
    e(f"v_add_u32 v{KA(1,m)}, s{sT}, v{K0R+m}")
    e(f"v_add_u32 v{QR+m}, s{sQL}, v{K0R+m}")
    e(f"v_add_u32 v{QR+2+m}, s{sQC}, v{K0R+m}")
e("v_lshrrev_b32 v8, 2, v2")
e("v_lshlrev_b32 v9, 7, v8")
e("v_and_b32 v10, 3, v2")
e("v_lshl_add_u32 v9, v10, 3, v9")
e("v_bfe_u32 v8, v8, 1, 2")
for xx in range(4):
    e(f"v_xor_b32 v11, {xx}, v8")
    e("v_lshl_add_u32 v11, v11, 5, v9")
    e(f"v_add_u32 v{VA(0,xx)}, s{sT2}, v11")
    e(f"v_add_u32 v{VA(1,xx)}, s{sT}, v11")
if args.full:
    e("v_and_b32 v5, 7, v2")
    e("v_lshlrev_b32 v5, 8, v5")
    e("v_lshrrev_b32 v8, 3, v3")
    e("v_lshl_add_u32 v5, v8, 6, v5")
else:
    e("v_lshlrev_b32 v5, 8, v3")
e("v_and_b32 v8, 1, v4")
e("v_lshl_add_u32 v5, v8, 5, v5")
e("v_lshrrev_b32 v8, 1, v4")
e("v_lshl_add_u32 v5, v8, 4, v5")
e("v_cmp_eq_u32 vcc, 0, v10")
e("v_mov_b32 v8, 0")
e("v_mov_b32 v9, 0x3f803f80")
e("v_cndmask_b32 v8, v8, v9, vcc")
for r in range(4): e(f"v_accvgpr_write_b32 a{ZER+r}, 0")
for r in range(4): e(f"v_accvgpr_write_b32 a{ONES+r}, v8")
lab("L_skipq")
c("zero accumulators with 0*0 MFMAs")
for b_ in (VF(1,0), VF(1,4), LA):
    e(f"{MF32} {ar(b_,16)}, {ar(ZER,4)}, {ar(ZER,4)}, 0")
e(f"{MF} {ar(LA+16,4)}, {ar(ZER,4)}, {ar(ZER,4)}, 0")
for b_ in range(16, 176, 16): e(f"{MF32} {vr(b_,16)}, {ar(ZER,4)}, {ar(ZER,4)}, 0")
for x in range(4): e(f"v_mov_b32 v{LV+x}, 0")
def kread(pos, p, kt, ks): return f"ds_read_b128 {ar(KF(p,kt,ks),4)}, v{KA(p,ks%2)} offset:{pos*SLOT + kt*2048 + (ks//2)*4096}"
def vread(pos, p, dt, uu): return f"ds_read_b64_tr_b16 {ar(VF(p,dt)+2*uu,2)}, v{VA(p,dt%4)} offset:{pos*SLOT + 16384 + (dt//4)*4096 + uu*2048}"
kr = lambda pos, p: [kread(pos, p, kt, ks) for kt in range(2) for ks in range(4)]
vrd = lambda pos, p: [vread(pos, p, dt, uu) for dt in range(8) for uu in range(2)]
MX = [6, 7, 8, 9, 10]; TX = [11, 12, 13, 14, 15]
def cross_and_cinit():
    for sw in ("v_permlane16_swap_b32", "v_permlane32_swap_b32"):
        for x in range(5): e(f"v_mov_b32 v{TX[x]}, v{MX[x]}")
        e("s_nop 0")
        for x in range(5): e(f"{sw} v{MX[x]}, v{TX[x]}")
        e("s_nop 0")
        for x in range(5): e(f"v_max_f32 v{MX[x]}, v{MX[x]}, v{TX[x]}")
    for x in range(5):
        for r in range(4): e(f"v_sub_f32 v{CI+4*x+r}, 0, v{MX[x]}")
e(f"s_cmp_lg_u32 s{sPASS}, 0")
e("s_cbranch_scc1 L_pass1")
q_dma(1, QD)
e(f"s_mov_b32 s{sC}, 0x3e0293ee")
e(f"s_mov_b32 s{sT}, 0xffff0000")
stamp(78)
e("s_waitcnt vmcnt(8)")
e("s_barrier")
stamp(80)
c("per tile: Q fragments from LDS, scale by log2(e)/sqrt(128), round to bf16, park in AGPRs, scores of the first 16 keys")
QT = 196
for ks in range(4): e(f"ds_read_b128 {vr(QT+4*ks,4)}, v{QR+2+ks%2} offset:{(ks//2)*2048}")
for ks in range(4): e(f"ds_read_b128 {ar(KF(1,0,ks),4)}, v{K0R+ks%2} offset:{(ks//2)*4096}")
for s_ in kr(0, 0): e(s_)
for i, x in enumerate((4, 0, 1, 2, 3)):
    if i:
        e("s_waitcnt vmcnt(8)")
        for ks in range(4): e(f"ds_read_b128 {vr(QT+4*ks,4)}, v{QR+ks%2} offset:{x*4096 + (ks//2)*2048}")
    if i < 2: q_dma(i + 2, QD)
    elif i == 2:
        emit_group(0, 1); emit_adv()
    else: emit_group(1, i - 3)
    e(f"s_waitcnt lgkmcnt({12 if i == 0 else 0})")
    for r in range(16):
        v = QT + r
        t0 = 6 + 2*(r % 4)
        e(f"v_lshlrev_b32 v{t0}, 16, v{v}")
        e(f"v_and_b32 v{t0+1}, s{sT}, v{v}")
        e(f"v_mul_f32 v{t0}, s{sC}, v{t0}")
        e(f"v_mul_f32 v{t0+1}, s{sC}, v{t0+1}")
        e(f"v_cvt_pk_bf16_f32 v{v}, v{t0}, v{t0+1}")
        if r: e(f"v_accvgpr_write_b32 a{QA+16*x+r-1}, v{v-1}")
    e(f"v_accvgpr_write_b32 a{QA+16*x+15}, v{QT+15}")
    e("s_waitcnt lgkmcnt(0)" if i == 0 else "s_nop 0")
    e("s_nop 0")
    for ks in range(4):
        cc = "0" if ks == 0 else vr(SV+4*x,4)
        e(f"{MF} {vr(SV+4*x,4)}, {ar(KF(1,0,ks),4)}, {ar(QA+16*x+4*ks,4)}, {cc}")
emit_adv()
for x in (4, 0, 1, 2, 3): e(f"v_max3_f32 v{MX[x]}, v{SV+4*x}, v{SV+4*x+1}, v{SV+4*x+2}")
for x in range(5): e(f"v_max_f32 v{MX[x]}, v{MX[x]}, v{SV+4*x+3}")
cross_and_cinit()
stamp(92)
e("s_waitcnt vmcnt(8)")
e("s_barrier")
stamp(84)
for s_ in vrd(0, 0): e(s_)
e("s_branch L_go")
lab("L_pass1")
emit_group(0, 1); emit_adv()
emit_group(1, 0); emit_group(1, 1); emit_adv()
e("s_waitcnt vmcnt(8)")
e("s_barrier")
for s_ in kr(0, 0) + vrd(0, 0): e(s_)
lab("L_go")
if args.otouch:
    c("touch the output pages (address translation only; the value is not used)")
    e(f"s_lshl_b32 s{sT}, s{sW}, 14")
    e(f"v_lshlrev_b32 v6, 8, v2")
    e(f"buffer_load_dword v7, v6, {srd(SO_)}, s{sT} offen")
if args.late >= 0: e(f"s_waitcnt vmcnt({args.late})")

hus = [(0,0),(1,0),(2,0),(3,0),(0,1),(1,1),(2,1),(3,1),(4,1)]
plen = [16 + (1 if ((u - 1) % 9) in MSUM else 0) for u in range(9)]
P0 = [sum(plen[:u]) for u in range(10)]
NG = P0[9]
def gp(u, k): return (P0[u % 9] + k) % NG

def regs(tok):
    m = re.match(r"([va])\[(\d+):(\d+)\]", tok)
    if m: return {(m.group(1), i) for i in range(int(m.group(2)), int(m.group(3))+1)}
    m = re.match(r"([va])(\d+)$", tok)
    if m: return {(m.group(1), int(m.group(2)))}
    return set()
def parse(ins):
    op, _, rest = ins.partition(" ")
    toks = [t.strip() for t in rest.split(",")]
    toks = [t.split()[0] if t else t for t in toks]
    return op, toks
def check(body):
    n = len(body); P = [parse(x) for x in body]
    for i, (op, t) in enumerate(P):
        for d in range(1, 12):
            op2, t2 = P[(i + d) % n]
            if op.startswith("v_mfma") and d <= 8:
                D = regs(t[0])
                if op2.startswith("v_") and not op2.startswith("v_mfma"):
                    rw = set().union(*[regs(x) for x in t2])
                    assert not (D & rw), ("mfma->valu", body[i], body[(i+d) % n], d)
                if op2.startswith("v_mfma"):
                    assert not (D & (regs(t2[1]) | regs(t2[2]))), ("mfma->mfmaAB", body[i], body[(i+d)%n])
                    if D & regs(t2[3]): assert regs(t2[3]) == D or d > 6
                if op2.startswith("ds_") : assert not (D & regs(t2[0]))
            if op.startswith("v_") and not op.startswith("v_mfma") and d <= 2 and op2.startswith("v_mfma"):
                assert not (regs(t[0]) & (regs(t2[1]) | regs(t2[2]) | regs(t2[3]))), ("valu->mfma", body[i], body[(i+d)%n], d)
            if op.startswith("v_exp") and d == 1 and op2.startswith("v_") and not op2.startswith("v_exp"):
                assert not (regs(t[0]) & set().union(*[regs(x) for x in t2[1:]])), ("trans", body[i], body[(i+d)%n])
            if op.startswith("v_mfma") and d <= 3 and op2.startswith("v_") and not op2.startswith("v_mfma"):
                assert not (regs(t[3]) & regs(t2[0])), ("srcC war", body[i], body[(i+d)%n])
            if t and t[0] == "m0" and d == 1: assert not op2.startswith("buffer_load"), "m0"
    last = None
    for ins in body + body:
        op = ins.split()[0]
        if op == "s_cselect_b32": assert last == "s_sub_u32", (ins, last)
        elif op in ("s_add_u32", "s_sub_u32", "s_and_b32", "s_cmp_lg_u32"): last = op
def isize(ins):
    op, t = parse(ins)
    if op.startswith(("v_mfma", "ds_", "buffer_", "v_cvt_pk")): return 8
    if op.endswith("_e64"): return 8
    if op.startswith("v_"): return 4
    if op in ("s_nop", "s_waitcnt", "s_barrier"): return 4
    for x in t[1:]:
        if re.match(r"^(0x[0-9a-f]+|\d+)$", x) and int(x, 0) > 64: return 8
    return 4
def flexible(ins): return ins.split()[0] in ("v_exp_f32", "v_add_f32")
def align(body):
    out = []; off = 0; bad = 0
    for i, ins in enumerate(body):
        if flexible(ins) and off % 8 == 0:
            nxt = body[i+1] if i + 1 < len(body) else "s_nop 0"
            if isize(nxt) == 8 and not flexible(nxt):
                op, _, rest = ins.partition(" "); ins = f"{op}_e64 {rest}"
        if isize(ins) == 8 and off % 8: bad += 1
        out.append(ins); off += isize(ins)
    return out, bad, off

def make_body(pos, last):
    mf = [None]*NG
    for u, (x, p) in enumerate(hus):
        sb = SV + 8*(u % 3); pb = PV + 4*(u % 3)
        for kt in range(2):
            for ks in range(4):
                cc = vr(CI+4*x,4) if ks == 0 else vr(sb+4*kt,4)
                mf[gp(u, 4*kt+ks)] = f"{MF} {vr(sb+4*kt,4)}, {ar(KF(p,kt,ks),4)}, {ar(QA+16*x+4*ks,4)}, {cc}"
        for dt in range(8):
            mf[gp(u+1, 8+dt)] = f"{MF} {vr(O(x,dt),4)}, {ar(VF(p,dt),4)}, {vr(pb,4)}, {vr(O(x,dt),4)}"
        if u in MSUM:
            mf[gp(u+1, 16)] = f"{MF} {ar(LA+4*x,4)}, {ar(ONES,4)}, {vr(pb,4)}, {ar(LA+4*x,4)}"
    assert all(mf)
    pre = [[] for _ in range(NG)]; val = [[] for _ in range(NG)]; cap = [2]*NG; expg = {}
    for u, (x, p) in enumerate(hus):
        sb = SV + 8*(u % 3); pb = PV + 4*(u % 3)
        eg_ = [gp(u,7), gp(u,9), gp(u,11), gp(u,13), gp(u,15), gp(u+1,0), gp(u+1,2), gp(u+1,4)]
        cg_ = [gp(u,10), gp(u,14), gp(u+1,1), gp(u+1,5)]
        for el in range(8):
            val[eg_[el]].append(f"v_exp_f32 v{sb+el}, v{sb+el}"); cap[eg_[el]] -= 2; expg[(u, el)] = eg_[el]
        for k_ in range(4):
            val[cg_[k_]].append(f"v_cvt_pk_bf16_f32 v{pb+k_}, v{sb+2*k_}, v{sb+2*k_+1}"); cap[cg_[k_]] -= 1
    assert min(cap) >= 0
    bu, bk = (int(x) for x in args.bar.split(","))
    BAR = gp(bu, bk)
    XG = [g for g in range(NG) if cap[g] == 2]
    DG = []; g = BAR + 3
    while len(DG) < 8:
        g = min(x for x in XG if x >= g); DG.append(g); cap[g] -= 1; g += args.dstep
    items = []
    def item(r, d, kind, text, chain): items.append(dict(r=r, d=d, kind=kind, text=text, chain=chain))
    for s_ in kr(pos, 1): item(0, gp(2,0), 'lds', s_, 'k1')
    for n, s_ in enumerate(vrd(pos, 1)): item(gp(0, 8 + n//2), BAR - 6, 'lds', s_, 'v1')
    for s_ in kr(1 - pos, 0): item(BAR + 1, gp(6,8), 'lds', s_, 'k0')
    for n, s_ in enumerate(vrd(1 - pos, 0)): item(max(gp(4, 8 + n//2), BAR + 1), NG - 7, 'lds', s_, 'v0')
    for u, (x, p) in enumerate(hus):
        if u in MSUM: continue
        for el in range(8):
            r = expg[(u, el)] + 1
            item(r, min(r + 22, NG - 1), 'valu', f"v_add_f32 v{LV+x}, v{LV+x}, v{SV+8*(u%3)+el}", f"sum{u}")
    done = set()
    for g in range(NG):
        while cap[g] > 0:
            cand = []; seen = set()
            for i, it in enumerate(items):
                if i in done or it['chain'] in seen: continue
                seen.add(it['chain'])
                if it['r'] > g: continue
                if it['kind'] == 'lds' and (g == BAR or g in DG or len(pre[g]) >= 2): continue
                cand.append((it['d'], i))
            if not cand: break
            _, i = min(cand)
            it = items[i]; done.add(i)
            assert g <= it['d'], ("deadline miss", it, g)
            (pre if it['kind'] == 'lds' else val)[g].append(it['text']); cap[g] -= 1
            it['g'] = g
    assert len(done) == len(items), [it for i, it in enumerate(items) if i not in done]
    def gl(ch): return [it['g'] for it in items if it['chain'] == ch]
    def free_slot(g0, n, g1=None):
        out = []; g = g0
        while len(out) < n:
            if not pre[g] and g not in DG and g != BAR: out.append(g)
            g += 1
        if g1 is not None: assert out[-1] <= g1, (out, g1)
        return out
    w = [g for g in range(max(gl('v1')) + 1, BAR) if not pre[g]]
    pre[w[-2]].append("s_waitcnt vmcnt(0)")
    pre[w[-1]].append("s_waitcnt lgkmcnt(0)")
    pre[BAR].append("s_barrier")
    d0 = dma_group(pos, 0); d1 = dma_group(pos, 1)
    pre[free_slot(BAR + 1, 1, DG[0] - 1)[0]].append(d0[0])
    pre[free_slot(DG[3] + 1, 1, DG[4] - 1)[0]].append(d1[0])
    for g, s_ in zip(DG, d0[1:] + d1[1:]): pre[g].append(s_)
    adv = free_slot(DG[-1] + 1, 5)
    for g, s_ in zip(adv, dma_advance()): pre[g].append(s_)
    w = [g for g in range(max(max(gl('v0')), adv[-1]) + 1, NG) if not pre[g]]
    if last:
        pre[w[-3]].append(f"s_sub_u32 s{sCNT}, s{sCNT}, 1")
        pre[w[-2]].append(f"s_cmp_lg_u32 s{sCNT}, 0")
    pre[w[-1]].append("s_waitcnt lgkmcnt(0)")
    for u in range(9):
        for (m_last, eg_) in ((3, 7), (7, 15)):
            gs = [gp(u, k) for k in range(m_last, eg_)]
            cnt = lambda: sum(len(pre[g]) + len(val[g]) for g in gs) + (eg_ - m_last) + len(pre[gp(u, eg_)])
            for g in gs + [gp(u, eg_)]:
                if cnt() >= 8: break
                if not pre[g]: pre[g].append("s_nop 0")
            assert cnt() >= 8
    body = []
    for g in range(NG):
        body.append(mf[g]); body += pre[g]; body += val[g]
    if args.report and last:
        for g in range(NG):
            u = max(i for i in range(9) if P0[i] <= g)
            print(g, u, g - P0[u], cap[g], " | ".join(x.split()[0] for x in pre[g]), "||", " | ".join(x.split()[0] for x in val[g]), file=sys.stderr)
        print("free VALU slots:", sum(cap), file=sys.stderr)
    return body
body = make_body(0, False) + make_body(1, True)
check(body)
body, bad, nbytes = align(body)
if args.report: print("misaligned 8-byte instrs:", bad, "bytes:", nbytes, "NG", NG, file=sys.stderr)

c("neutral state for the 'previous' half-unit 8")
done_el = 5; done_cv = 2
sb8 = SV + 8*(8 % 3); pb8 = PV + 4*(8 % 3)
e("v_mov_b32 v6, 0xf149f2ca")
for el in range(8): e(f"v_mov_b32 v{sb8+el}, {'0' if el < done_el else 'v6'}")
for r in range(4): e(f"v_mov_b32 v{pb8+r}, 0")
e(f"s_mov_b32 s{sCNT}, 16")
if args.stamp == 4:
    e("s_mov_b32 s56, s60"); e("s_mov_b32 s57, s61"); e("s_mov_b32 s58, 0x100000"); e("s_mov_b32 s59, 0x20000")
if args.stamp:
    e("s_memtime s[66:67]"); e("s_memrealtime s[74:75]")
e("s_waitcnt lgkmcnt(0)")
L.append(".p2align 6")
lab("L_loop")
if args.stamp == 4:
    e("s_memrealtime s[94:95]")
for s in body:
    if args.stamp == 4 and s.startswith(f"s_sub_u32 s{sCNT}"):
        e("s_waitcnt lgkmcnt(0)")
        e("v_mov_b32 v1, s94")
        e(f"s_lshl_b32 s96, s{sCNT}, 2")
        e("s_lshl_b32 s97, s2, 7")
        e("s_add_u32 s96, s96, s97")
        e("v_mov_b32 v0, 0")
        e("buffer_store_dword v1, v0, s[56:59], s96 offen offset:4092")
    e(s)
e("s_cbranch_scc1 L_loop")
if args.stamp:
    e("s_memtime s[68:69]"); e("s_memrealtime s[76:77]")
XB = QBASE
c("drain half-unit 8 (shared tile); row sums of tiles 0..3")
for el in range(done_el, 8): e(f"v_exp_f32 v{sb8+el}, v{sb8+el}")
for x in range(4): e(f"v_mov_b32 v{6+x}, v{LV+x}")
for k_ in range(done_cv, 4): e(f"v_cvt_pk_bf16_f32 v{pb8+k_}, v{sb8+2*k_}, v{sb8+2*k_+1}")
for x in range(4): e(f"v_permlane16_swap_b32 v{LV+x}, v{6+x}")
e(f"{MF} {ar(LA+16,4)}, {ar(ONES,4)}, {vr(pb8,4)}, {ar(LA+16,4)}")
dr = [f"{MF} {vr(O(4,dt),4)}, {ar(VF(1,dt),4)}, {vr(pb8,4)}, {vr(O(4,dt),4)}" for dt in range(8)]
for x in range(4): e(f"v_add_f32 v{LV+x}, v{LV+x}, v{6+x}")
e(dr[0])
for x in range(4): e(f"v_mov_b32 v{6+x}, v{LV+x}")
e(dr[1])
e("v_lshlrev_b32 v12, 4, v2")
e(f"v_add_u32 v12, {XB}, v12")
for x in range(4): e(f"v_permlane32_swap_b32 v{LV+x}, v{6+x}")
e(dr[2])
e("v_lshlrev_b32 v13, 2, v2")
e(f"v_add_u32 v13, {XB}, v13")
for x in range(4): e(f"v_add_f32 v{LV+x}, v{LV+x}, v{6+x}")
e(dr[3])
IV = [6, 8, 10, 14]
for x in range(4): e(f"v_accvgpr_read_b32 v{IV[x]}, a{LA+4*x}")
e(dr[4])
for x in range(4): e(f"v_add_f32 v{IV[x]}, v{IV[x]}, v{LV+x}")
e(dr[5])
e(f"v_accvgpr_read_b32 v{LV+3}, a{LA+16}")
e(f"v_add_f32 v{LV}, v6, v8"); e(f"v_add_f32 v{LV+1}, v10, v14")
e(dr[6])
for x in range(4): e(f"v_rcp_f32 v{IV[x]}, v{IV[x]}")
e(dr[7])
e(f"v_add_f32 v{LV}, v{LV}, v{LV+1}"); e(f"v_add_f32 v{LV}, v{LV}, v{LV+3}")
e(f"s_lshl_b32 s{sT}, s{sW}, 12")
e(f"v_add_u32 v7, s{sT}, v12")
e(f"s_xor_b32 s{sT}, s{sT}, 4096")
e(f"v_add_u32 v12, s{sT}, v12")
e(f"s_lshl_b32 s{sT}, s{sW}, 9")
e(f"v_add_u32 v9, s{sT}, v13")
e(f"s_xor_b32 s{sT}, s{sT}, 512")
e(f"v_add_u32 v11, s{sT}, v13")
def store_tile(base, ndt, inv, soff, tmp0):
    n = ndt // 2
    for dp in range(n):
        for k_ in range(0, 8, 2):
            r = base + 8*dp + k_
            e(f"v_pk_mul_f32 {vr(r,2)}, {vr(r,2)}, {vr(inv,2)} op_sel_hi:[1,0]")
    for dp in range(n):
        for k_ in range(4):
            e(f"v_cvt_pk_bf16_f32 v{tmp0+4*dp+k_}, v{base+8*dp+2*k_}, v{base+8*dp+2*k_+1}")
    if n < 4: e("s_nop 1")
    for dp in range(n):
        t = tmp0 + 4*dp
        e(f"v_permlane16_swap_b32 v{t}, v{t+2}")
        e(f"v_permlane16_swap_b32 v{t+1}, v{t+3}")
        if not args.full: e(f"buffer_store_dwordx4 {vr(t,4)}, v5, {srd(SO_)}, s{soff} offen offset:{dp*64} {args.ont}")
    for j in range(n // 2 if args.full else 0):
        X = tmp0 + 8*j; Y = X + 4; T = base + 8*j
        for k_ in range(4): e(f"v_mov_b32 v{T+k_}, v{X+k_}")
        for k_ in range(4): e(f"v_mov_b32_dpp v{X+k_}, v{Y+k_} row_shr:8 row_mask:0xf bank_mask:0xc")
        e(f"buffer_store_dwordx4 {vr(X,4)}, v5, {srd(SO_)}, s{soff} offen offset:{j*128} {args.ont}")
        for k_ in range(4): e(f"v_mov_b32_dpp v{Y+k_}, v{T+k_} row_shl:8 row_mask:0xf bank_mask:0x3")
        e(f"buffer_store_dwordx4 {vr(Y,4)}, v5, {srd(SO_)}, s{soff} offen offset:{j*128 + 2048} {args.ont}")
if args.stamp == 5: e("s_memtime s[78:79]")
e(f"s_lshl_b32 s{sT}, s{sW}, 14")
store_tile(O(0,0), 8, IV[0], sT, SV)
if args.stamp == 5: e("s_memtime s[80:81]")
c("even wave keeps d-tiles 0..3 of the shared tile and hands over 4..7; odd wave the reverse")
e(f"s_and_b32 s{sT2}, s{sW}, 1")
e(f"s_cmp_eq_u32 s{sT2}, 0")
e("s_cbranch_scc1 L_even")
for i in range(4): e(f"ds_write_b128 v7, {vr(O(4,i),4)} offset:{i*1024}")
e("s_nop 3")
for i in range(16): e(f"v_mov_b32 v{O(4,0)+i}, v{O(4,4)+i}")
e("s_branch L_wdone")
lab("L_even")
for i in range(4): e(f"ds_write_b128 v7, {vr(O(4,4+i),4)} offset:{i*1024}")
lab("L_wdone")
e(f"ds_write_b32 v9, v{LV+3} offset:16384")
e(f"ds_write_b32 v9, v{LV} offset:16640")
e(f"s_add_u32 s{sT}, s{sT}, 4096")
store_tile(O(1,0), 8, IV[1], sT, SV+16)
if args.stamp == 5: e("s_memtime s[84:85]")
e("s_waitcnt lgkmcnt(0)")
e("s_barrier")
if args.stamp == 5: e("s_memtime s[86:87]")
for i in range(4): e(f"ds_read_b128 {vr(O(4,4+i),4)}, v12 offset:{i*1024}")
e(f"ds_read_b32 v{LV+2}, v11 offset:16384")
for ww in range(4): e(f"ds_read_b32 v{16+ww}, v13 offset:{16640+ww*512}")
e(f"s_add_u32 s{sT}, s{sT}, 4096")
store_tile(O(2,0), 8, IV[2], sT, SV)
e(f"s_add_u32 s{sT}, s{sT}, 4096")
store_tile(O(3,0), 8, IV[3], sT, SV+16)
if args.stamp == 5: e("s_memtime s[88:89]")
e("s_waitcnt lgkmcnt(0)")
e("v_add_f32 v16, v16, v17"); e("v_add_f32 v18, v18, v19"); e(f"v_add_f32 v6, v{LV+2}, v{LV+3}"); e("v_add_f32 v16, v16, v18")
e(f"v_mov_b32 v17, {'0' if args.forcefb else '0x4e800000'}")
e("v_cmp_nlt_f32 vcc, v16, v17")
e("v_rcp_f32 v6, v6")
e(f"s_cmp_lg_u32 s{sPASS}, 0")
e("s_cbranch_scc1 L_nofb")
e("s_cbranch_vccnz L_fallback")
lab("L_nofb")
for r in range(0, 16, 2): e(f"v_pk_add_f32 {vr(O(4,0)+r,2)}, {vr(O(4,0)+r,2)}, {vr(O(4,4)+r,2)}")
e(f"s_lshr_b32 s{sT}, s{sW}, 1")
e(f"s_lshl_b32 s{sT}, s{sT}, 12")
e(f"s_lshl_b32 s{sT2}, s{sT2}, 7")
e(f"s_add_u32 s{sT}, s{sT}, s{sT2}")
e(f"s_add_u32 s{sT}, s{sT}, 65536")
store_tile(O(4,0), 4, 6, sT, SV)
if args.stamp:
    e("s_memtime s[70:71]")
    e("s_memrealtime s[72:73]")
    if args.stamp == 5:
        e("s_waitcnt vmcnt(0)"); e("s_memtime s[92:93]")
    e("s_waitcnt lgkmcnt(0)")
    if args.stamp == 5: e("s_mov_b32 s62, s68")
    e("s_cmp_lg_u32 s2, 5")
    e("s_cbranch_scc1 L_end")
    e("s_mov_b32 s56, s60"); e("s_mov_b32 s57, s61"); e("s_mov_b32 s58, 256"); e("s_mov_b32 s59, 0x20000")
    for a, b in ((66,62),(68,62),(70,62),(74,64),(76,64),(72,64),(78,62),(80,62),(84,62),(86,62),(88,62),(92,62)): e(f"s_sub_u32 s{a}, s{a}, s{b}")
    for i, a in enumerate((80,84,66,68,70,74,76,72) if args.stamp in (1, 4) else (78,80,84,86,88,70,92,68) if args.stamp == 5 else (86,88,78,80,92,84,66,68)): e(f"v_mov_b32 v{8+i}, s{a}")
    e(f"s_lshl_b32 s{sT}, s{sW}, 5")
    e(f"v_mov_b32 v6, s{sT}")
    e("buffer_store_dwordx4 v[8:11], v6, s[56:59], 0 offen")
    e("buffer_store_dwordx4 v[12:15], v6, s[56:59], 0 offen offset:16")
lab("L_end")
e("s_endpgm")

lab("L_fallback")
c("some row outgrew its reference max: exact row maxima over all keys, then run the main pass again")
e(f"s_mov_b32 s{SK_+2}, 0x80000")
e(f"s_mov_b32 s{sPASS}, 1")
e(f"s_mov_b32 s{sT}, 0")
e(f"v_lshlrev_b32 v{PV}, 8, v3")
e(f"v_lshl_add_u32 v{PV}, v4, 4, v{PV}")
for x in range(5): e(f"v_mov_b32 v{MX[x]}, 0xff800000")
lab("L_fbloop")
e(f"s_add_u32 s{sT2}, s{sT}, 4096")
for kt in range(2):
    for ks in range(4):
        e(f"buffer_load_dwordx4 {ar(KF(1,kt,ks),4)}, v{PV}, {srd(SK_)}, s{sT2 if kt else sT} offen offset:{ks*64}")
e("s_waitcnt vmcnt(0)")
for x in range(5):
    for kt in range(2):
        for ks in range(4):
            sreg = 16 + 8*x + 4*kt
            cc = "0" if ks == 0 else vr(sreg,4)
            e(f"{MF} {vr(sreg,4)}, {ar(KF(1,kt,ks),4)}, {ar(QA+16*x+4*ks,4)}, {cc}")
e("s_nop 7")
for x in range(5):
    for i in range(0, 8, 2):
        e(f"v_max3_f32 v{MX[x]}, v{MX[x]}, v{16+8*x+i}, v{16+8*x+i+1}")
e(f"s_add_u32 s{sT}, s{sT}, 8192")
e(f"s_cmp_lt_u32 s{sT}, 0x80000")
e("s_cbranch_scc1 L_fbloop")
cross_and_cinit()
e("s_barrier")
e("s_branch L_restart")
lab("L_codeend")

L.append('.section .rodata,"a"\n.p2align 6')
L.append(f".amdhsa_kernel {KN}")
L.append("  .amdhsa_next_free_vgpr 512\n  .amdhsa_next_free_sgpr 102\n  .amdhsa_accum_offset 256\n  .amdhsa_group_segment_fixed_size 0\n  .amdhsa_kernarg_size 48\n  .amdhsa_user_sgpr_count 2\n  .amdhsa_user_sgpr_kernarg_segment_ptr 1\n  .amdhsa_system_sgpr_workgroup_id_x 1\n.end_amdhsa_kernel")
print("\n".join(L))
```

```python
import sys, argparse, re
ap = argparse.ArgumentParser()
ap.add_argument("--nt", default="nt")
ap.add_argument("--qnt", default="nt")
ap.add_argument("--ont", default="")
ap.add_argument("--rot", type=int, default=0)
ap.add_argument("--stamp", type=int, default=0)
ap.add_argument("--forcefb", type=int, default=0)
ap.add_argument("--report", type=int, default=0)
ap.add_argument("--msum", default="0,1,2,3,4,5,6,7,8")
ap.add_argument("--dstep", type=int, default=8)
ap.add_argument("--bar", default="3,14")
ap.add_argument("--otouch", type=int, default=0)
ap.add_argument("--full", type=int, default=0)
ap.add_argument("--diagpause", type=int, default=0)
ap.add_argument("--diagslow", type=int, default=0)
ap.add_argument("--dcost", type=int, default=1)
ap.add_argument("--lds1", type=int, default=0)
ap.add_argument("--diag", default="")
ap.add_argument("--diagramp", type=int, default=0)
ap.add_argument("--late", type=int, default=-1)
args = ap.parse_args()
MSUM = set(int(x) for x in args.msum.split(","))
assert 8 in MSUM

KN = "standalone__mha_softmax__near_ridge_kernel"
L = []
def e(s): L.append("    " + s)
def lab(s): L.append(s + ":")
def c(s): L.append("    ; " + s)

def O(x, dt): return 16 + 32*x + 4*dt
SV = 176; PV = 200; CI = 212
def KA(p, m): return 232 + 2*p + m
def VA(p, x): return 236 + 4*p + x
DK = 244; DV = 248; LV = 252
QA = 0
def KF(b, kt, ks): return 80 + 32*b + 16*kt + 4*ks
def VF(b, dt): return 144 + 32*b + 4*dt
LA = 208; ONES = 228; ZER = 232
SK_, SV_, SQ_, SO_ = 8, 12, 16, 20
sW = 24; sGOFF = 26; sFB = 27; sREM = 28; sT = 34; sCNT = 35; sPASS = 36; sC = 37; sT2 = 38; sG0 = 39
sQL = 50; sQG = 51; sQC = 52; sQCG = 53; sQCL = 54; sSC = 55; sHI = 25
SLOT = 32768; QBASE = 65536; LDS = QBASE + 73728
def srd(b): return f"s[{b}:{b+3}]"
def vr(b, n): return f"v[{b}:{b+n-1}]"
def ar(b, n): return f"a[{b}:{b+n-1}]"
MF = "v_mfma_f32_16x16x32_bf16"
MF32 = "v_mfma_f32_32x32x16_bf16"
def stamp(r):
    if args.stamp and args.stamp != 5: e(f"s_memtime s[{r}:{r+1}]")

hdr = open("standalone__mha_softmax__near_ridge.s.ref").read().split("\n")
for ln in hdr:
    if ln.startswith("; @launch"): break
    if ln.startswith(";"): L.append(ln)
L.append(f"; @launch grid=(256,1,1) block=(256,1,1) lds={LDS}")
L.append('.amdgcn_target "amdgcn-amd-amdhsa--gfx950"')
L.append(f".text\n.globl {KN}\n.p2align 8\n.type {KN},@function")
lab(KN)
e("s_cmp_ge_u32 s2, 256")
e("s_cbranch_scc1 L_end")
e("s_load_dwordx8 s[40:47], s[0:1], 0")
if args.stamp:
    e("s_load_dwordx2 s[60:61], s[0:1], 32")
    e("s_memtime s[62:63]")
    e("s_memrealtime s[64:65]")
c("pull this kernel's code into L2 so that instruction fetch does not go to HBM line by line")
e("s_getpc_b64 s[48:49]")
lab("L_pc")
e("v_lshlrev_b32 v1, 7, v0")
e("v_min_u32 v1, L_codeend-L_pc-4, v1")
e(f"global_load_dword v{SV}, v1, s[48:49]")
e("v_lshrrev_b32 v1, 6, v0")
e("v_and_b32 v2, 63, v0")
e(f"v_readfirstlane_b32 s{sW}, v1")
e("v_lshrrev_b32 v6, 3, v2")
e("v_and_b32 v7, 7, v2")
c("DMA per-lane source offsets; for K/V this wave moves group sub = w>>1, dh = w&1 of every 64-key slot")
e("v_lshrrev_b32 v9, 1, v6")
e("v_lshlrev_b32 v8, 8, v6")
e("v_xor_b32 v10, v9, v7")
e("v_lshl_add_u32 v12, v10, 4, v8")
e("v_xor_b32 v10, 4, v10")
e("v_lshl_add_u32 v13, v10, 4, v8")
e("v_add_u32 v13, 2048, v13")
e(f"s_lshr_b32 s{sT}, s{sW}, 1")
e(f"s_lshl_b32 s{sT}, s{sT}, 13")
e(f"s_and_b32 s{sT2}, s{sW}, 1")
e(f"s_lshl_b32 s{sT2}, s{sT2}, 7")
e(f"s_add_u32 s{sT}, s{sT}, s{sT2}")
e(f"v_add_u32 v{DK}, s{sT}, v12")
e(f"v_add_u32 v{DK+1}, s{sT}, v13")
e(f"v_subrev_u32 v{DK+1}, 1024, v{DK+1}")
e(f"v_add_u32 v{DK+2}, 2048, v{DK}")
e(f"v_add_u32 v{DK+3}, 2048, v{DK+1}")
e("v_lshlrev_b32 v10, 1, v9")
e("v_xor_b32 v10, v10, v7")
e("v_lshl_add_u32 v10, v10, 4, v8")
e(f"v_add_u32 v{DV}, s{sT}, v10")
for rb in range(1, 4): e(f"v_add_u32 v{DV+rb}, {rb*1024}, v{DV}")
e(f"s_mul_i32 s{sT}, s2, 73728")
e(f"s_lshl_b32 s{sT2}, s2, 19")
e(f"s_mov_b32 s{SQ_+2}, 73728"); e(f"s_mov_b32 s{SQ_+3}, 0x20000")
e(f"s_mov_b32 s{SK_+3}, 0x20000"); e(f"s_mov_b32 s{SV_+3}, 0x20000")
e(f"s_mov_b32 s{SO_+2}, 73728"); e(f"s_mov_b32 s{SO_+3}, 0x20000")
e(f"s_mov_b32 s{sPASS}, 0")
e(f"s_lshl_b32 s{sFB}, s{sW}, 12")
if args.rot:
    e(f"s_mul_i32 s{sG0}, s2, {args.rot}")
    e(f"s_and_b32 s{sG0}, s{sG0}, 31")
    e(f"s_lshl_b32 s{sG0}, s{sG0}, 14")
else:
    e(f"s_mov_b32 s{sG0}, 0")
e("s_waitcnt lgkmcnt(0)")
stamp(86)
e(f"s_add_u32 s{SK_}, s42, s{sT2}"); e(f"s_addc_u32 s{SK_+1}, s43, 0")
e(f"s_add_u32 s{SQ_}, s40, s{sT}"); e(f"s_addc_u32 s{SQ_+1}, s41, 0")
e(f"s_add_u32 s{SV_}, s44, s{sT2}"); e(f"s_addc_u32 s{SV_+1}, s45, 0")
e(f"s_add_u32 s{SO_}, s46, s{sT}"); e(f"s_addc_u32 s{SO_+1}, s47, 0")

def dma_group(pos, kv):
    off = pos*SLOT + kv*16384
    r = [f"s_add_u32 m0, s{sFB}, {off}" if off else f"s_mov_b32 m0, s{sFB}"]
    for rb in range(4):
        v = (DV if kv else DK) + rb
        r.append(f"buffer_load_dwordx4 v{v}, {srd(SV_ if kv else SK_)}, s{sGOFF} offen offset:{rb*1024} {args.nt} lds")
    return r
def dma_advance():
    return [f"s_add_u32 s{sGOFF}, s{sGOFF}, 16384",
            f"s_and_b32 s{sGOFF}, s{sGOFF}, 0x7ffff",
            f"s_sub_u32 s{sREM}, s{sREM}, 1",
            f"s_cselect_b32 s{SK_+2}, 0, s{SK_+2}",
            f"s_cselect_b32 s{SV_+2}, 0, s{SV_+2}"]
def emit_group(pos, kv):
    g = dma_group(pos, kv)
    e(g[0]); e("s_nop 0")
    for s in g[1:]: e(s)
def emit_adv():
    for s in dma_advance(): e(s)

QD = 252; QR = 254; QRC = 224; K0R = 226
e(f"v_mov_b32 v{QD}, v12"); e(f"v_mov_b32 v{QD+1}, v13")
e(f"s_lshl_b32 s{sQG}, s{sW}, 14")
e(f"s_add_u32 s{sQL}, s{sQG}, {QBASE}")
e(f"s_lshr_b32 s{sT}, s{sW}, 1")
e(f"s_lshl_b32 s{sT}, s{sT}, 12")
e(f"s_add_u32 s{sT}, s{sT}, 65536")
e(f"s_add_u32 s{sQC}, s{sT}, {QBASE}")
e(f"s_and_b32 s{sC}, s{sW}, 1")
e(f"s_lshl_b32 s{sT2}, s{sC}, 7")
e(f"s_add_u32 s{sQCG}, s{sT}, s{sT2}")
e(f"s_lshl_b32 s{sC}, s{sC}, 11")
e(f"s_add_u32 s{sQCL}, s{sQC}, s{sC}")
lab("L_restart")
e(f"s_mov_b32 s{SK_+2}, 0x80000"); e(f"s_mov_b32 s{SV_+2}, 0x80000")
e(f"s_mov_b32 s{sGOFF}, s{sG0}")
e(f"s_mov_b32 s{sREM}, 31")
emit_group(0, 0)
c("Q -> LDS; 4 KB per 16-row tile: [dh][8-row half][1 KB]; the two waves of a pair each bring half of their shared tile")
e(f"s_mov_b32 m0, s{sQCL}")
e("s_nop 0")
e(f"buffer_load_dwordx4 v{QD}, {srd(SQ_)}, s{sQCG} offen {args.qnt} lds")
e(f"s_add_u32 m0, s{sQCL}, 1024")
e("s_nop 0")
e(f"buffer_load_dwordx4 v{QD+1}, {srd(SQ_)}, s{sQCG} offen {args.qnt} lds")
def q_dma(x):
    for dh in range(2):
        e(f"s_add_u32 s{sT2}, s{sQG}, {x*4096 + dh*128}")
        for j in range(2):
            e(f"s_add_u32 m0, s{sQL}, {x*4096 + dh*2048 + j*1024}")
            e("s_nop 0")
            e(f"buffer_load_dwordx4 v{QD+j}, {srd(SQ_)}, s{sT2} offen {args.qnt} lds")
q_dma(0)
stamp(88)
e(f"s_cmp_lg_u32 s{sPASS}, 0")
e("s_cbranch_scc1 L_skipset")
c("(register set-up while the first loads fly)")
e("v_and_b32 v3, 15, v2")
e("v_lshrrev_b32 v4, 4, v2")
e("v_lshlrev_b32 v8, 7, v3")
e("v_lshrrev_b32 v9, 1, v3")
e("v_xor_b32 v9, v9, v4")
e(f"v_lshl_add_u32 v{K0R}, v9, 4, v8")
e("v_xor_b32 v10, 4, v9")
e(f"v_lshl_add_u32 v{K0R+1}, v10, 4, v8")
c("position p works on 32-key subtile (w+1+p)&1 of the slot")
e(f"s_and_b32 s{sT}, s{sW}, 1")
e(f"s_lshl_b32 s{sT}, s{sT}, 13")
e(f"s_xor_b32 s{sT2}, s{sT}, 8192")
for m in range(2):
    e(f"v_add_u32 v{KA(0,m)}, s{sT2}, v{K0R+m}")
    e(f"v_add_u32 v{KA(1,m)}, s{sT}, v{K0R+m}")
    e(f"v_add_u32 v{QR+m}, s{sQL}, v{K0R+m}")
    e(f"v_add_u32 v{QRC+m}, s{sQC}, v{K0R+m}")
e("v_lshrrev_b32 v8, 2, v2")
e("v_lshlrev_b32 v9, 7, v8")
e("v_and_b32 v10, 3, v2")
e("v_lshl_add_u32 v9, v10, 3, v9")
e("v_bfe_u32 v8, v8, 1, 2")
for xx in range(4):
    e(f"v_xor_b32 v11, {xx}, v8")
    e("v_lshl_add_u32 v11, v11, 5, v9")
    e(f"v_add_u32 v{VA(0,xx)}, s{sT2}, v11")
    e(f"v_add_u32 v{VA(1,xx)}, s{sT}, v11")
e("v_lshlrev_b32 v5, 8, v3")
e("v_and_b32 v8, 1, v4")
e("v_lshl_add_u32 v5, v8, 5, v5")
e("v_lshrrev_b32 v8, 1, v4")
e("v_lshl_add_u32 v5, v8, 4, v5")
e("v_cmp_eq_u32 vcc, 0, v10")
e("v_mov_b32 v8, 0")
e("v_mov_b32 v9, 0x3f803f80")
e("v_cndmask_b32 v8, v8, v9, vcc")
for r in range(4): e(f"v_accvgpr_write_b32 a{ZER+r}, 0")
for r in range(4): e(f"v_accvgpr_write_b32 a{ONES+r}, v8")
e(f"s_mov_b32 s{sSC}, 0x3e0293ee")
e(f"s_mov_b32 s{sHI}, 0xffff0000")
lab("L_skipset")
c("zero accumulators with 0*0 MFMAs")
e(f"{MF32} {ar(LA,16)}, {ar(ZER,4)}, {ar(ZER,4)}, 0")
e(f"{MF} {ar(LA+16,4)}, {ar(ZER,4)}, {ar(ZER,4)}, 0")
for b_ in range(16, 176, 16): e(f"{MF32} {vr(b_,16)}, {ar(ZER,4)}, {ar(ZER,4)}, 0")
assert len(MSUM) == 9
def kread(pos, p, kt, ks): return f"ds_read_b128 {ar(KF(p,kt,ks),4)}, v{KA(p,ks%2)} offset:{pos*SLOT + kt*2048 + (ks//2)*4096}"
def vread(pos, p, dt, uu): return f"ds_read_b64_tr_b16 {ar(VF(p,dt)+2*uu,2)}, v{VA(p,dt%4)} offset:{pos*SLOT + 16384 + (dt//4)*4096 + uu*2048}"
kr = lambda pos, p: [kread(pos, p, kt, ks) for kt in range(2) for ks in range(4)]
vrd = lambda pos, p: [vread(pos, p, dt, uu) for dt in range(8) for uu in range(2)]
MX = [6, 7, 8, 9, 10]; TX = [11, 12, 13, 14, 15]
def cross_and_cinit(xs=range(5)):
    pad = "s_nop 0" if len(xs) > 1 else "s_nop 1"
    for sw in ("v_permlane16_swap_b32", "v_permlane32_swap_b32"):
        for x in xs: e(f"v_mov_b32 v{TX[x]}, v{MX[x]}")
        e(pad)
        for x in xs: e(f"{sw} v{MX[x]}, v{TX[x]}")
        e("s_nop 0")
        for x in xs: e(f"v_max_f32 v{MX[x]}, v{MX[x]}, v{TX[x]}")
    for x in xs:
        for r in range(4): e(f"v_sub_f32 v{CI+4*x+r}, 0, v{MX[x]}")
QT = 196
qn = [0]
def q_tile(x, nlgkm_after=0):
    qn[0] += 1
    e(f"s_cmp_lg_u32 s{sPASS}, 0")
    e(f"s_cbranch_scc1 L_sq{qn[0]}")
    if x < 4:
        for ks in range(4): e(f"ds_read_b128 {vr(QT+4*ks,4)}, v{QR+ks%2} offset:{x*4096 + (ks//2)*2048}")
    else:
        for ks in range(4): e(f"ds_read_b128 {vr(QT+4*ks,4)}, v{QRC+ks%2} offset:{(ks//2)*2048}")
        for ks in range(4): e(f"ds_read_b128 {ar(VF(1,ks),4)}, v{K0R+ks%2} offset:{(ks//2)*4096}")
    e(f"s_waitcnt lgkmcnt({4 if x == 4 else 0})")
    for r in range(16):
        v = QT + r
        t0 = 6 + 2*(r % 4)
        e(f"v_lshlrev_b32 v{t0}, 16, v{v}")
        e(f"v_and_b32 v{t0+1}, s{sHI}, v{v}")
        e(f"v_mul_f32 v{t0}, s{sSC}, v{t0}")
        e(f"v_mul_f32 v{t0+1}, s{sSC}, v{t0+1}")
        e(f"v_cvt_pk_bf16_f32 v{v}, v{t0}, v{t0+1}")
        if r: e(f"v_accvgpr_write_b32 a{QA+16*x+r-1}, v{v-1}")
    e(f"v_accvgpr_write_b32 a{QA+16*x+15}, v{QT+15}")
    e("s_waitcnt lgkmcnt(0)")
    e("s_nop 0")
    for ks in range(4):
        cc = "0" if ks == 0 else vr(SV,4)
        kf = VF(1,ks) if x == 4 else KF(0,0,ks)
        e(f"{MF} {vr(SV,4)}, {ar(kf,4)}, {ar(QA+16*x+4*ks,4)}, {cc}")
    e("s_nop 7")
    e(f"v_max3_f32 v{MX[x]}, v{SV}, v{SV+1}, v{SV+2}")
    e(f"v_max_f32 v{MX[x]}, v{MX[x]}, v{SV+3}")
    cross_and_cinit([x])
    lab(f"L_sq{qn[0]}")
def s_(i): return SV + 8*i
def p_(i): return PV + 4*i
def qk(x, p, i):
    for kt in range(2):
        for ks in range(4):
            cc = vr(CI+4*x,4) if ks == 0 else vr(s_(i)+4*kt,4)
            e(f"{MF} {vr(s_(i)+4*kt,4)}, {ar(KF(p,kt,ks),4)}, {ar(QA+16*x+4*ks,4)}, {cc}")
def ex(i, n=8):
    for el in range(n): e(f"v_exp_f32 v{s_(i)+el}, v{s_(i)+el}")
def cv(i, n=4):
    for k_ in range(n): e(f"v_cvt_pk_bf16_f32 v{p_(i)+k_}, v{s_(i)+2*k_}, v{s_(i)+2*k_+1}")
def pv(x, p, i):
    for dt in range(8): e(f"{MF} {vr(O(x,dt),4)}, {ar(VF(p,dt),4)}, {vr(p_(i),4)}, {vr(O(x,dt),4)}")
    e(f"{MF} {ar(LA+4*x,4)}, {ar(ONES,4)}, {vr(p_(i),4)}, {ar(LA+4*x,4)}")
def pair_front(a, b):
    e("s_nop 1")
    qk(a[0], a[1], 0); qk(b[0], b[1], 1)
    ex(0); ex(1); cv(0); cv(1); e("s_nop 1")
def pair_back(a, b):
    pv(a[0], a[1], 0); pv(b[0], b[1], 1)
c("---- first 64 keys: worked off tile by tile while Q is still arriving ----")
q_dma(1)
stamp(78)
e("s_waitcnt vmcnt(8)")
e("s_barrier")
stamp(80)
for x_ in kr(0, 0) + kr(0, 1): e(x_)
emit_group(0, 1); emit_adv()
q_tile(4)
e("s_waitcnt vmcnt(8)")
q_dma(2)
q_tile(0)
e("s_waitcnt vmcnt(8)")
q_dma(3)
q_tile(1)
e("s_waitcnt lgkmcnt(0)")
pair_front((0,0), (1,0))
e("s_waitcnt vmcnt(8)")
e("s_barrier")
for x_ in vrd(0, 0) + vrd(0, 1): e(x_)
emit_group(1, 0)
e("s_waitcnt lgkmcnt(15)")
pair_back((0,0), (1,0))
pair_front((0,1), (1,1))
e("s_waitcnt lgkmcnt(0)")
pair_back((0,1), (1,1))
e("s_waitcnt vmcnt(8)")
emit_group(1, 1); emit_adv()
q_tile(2)
pair_front((2,0), (2,1)); pair_back((2,0), (2,1))
e("s_waitcnt vmcnt(8)")
q_tile(3)
pair_front((3,0), (3,1)); pair_back((3,0), (3,1))
done_el = 5; done_cv = 2
qk(4, 1, 2)
stamp(92)
e("s_waitcnt vmcnt(0)")
e("s_barrier")
stamp(84)
for x_ in kr(1, 0) + vrd(1, 0): e(x_)
emit_group(0, 0); emit_group(0, 1); emit_adv()
ex(2, done_el); e("s_nop 0"); cv(2, done_cv)
if args.late >= 0: e(f"s_waitcnt vmcnt({args.late})")

HUS = [(0,0),(1,0),(2,0),(3,0),(0,1),(1,1),(2,1),(3,1),(4,1)]
HUS_LAST = [(0,0),(0,1),(1,0),(1,1),(2,0),(2,1),(3,0),(3,1),(4,1)]

def regs(tok):
    m = re.match(r"([va])\[(\d+):(\d+)\]", tok)
    if m: return {(m.group(1), i) for i in range(int(m.group(2)), int(m.group(3))+1)}
    m = re.match(r"([va])(\d+)$", tok)
    if m: return {(m.group(1), int(m.group(2)))}
    return set()
def parse(ins):
    op, _, rest = ins.partition(" ")
    toks = [t.strip() for t in rest.split(",")]
    toks = [t.split()[0] if t else t for t in toks]
    return op, toks
def check(body):
    n = len(body); P = [parse(x) for x in body]
    for i, (op, t) in enumerate(P):
        for d in range(1, 12):
            op2, t2 = P[(i + d) % n]
            if op.startswith("v_mfma") and d <= 8:
                D = regs(t[0])
                if op2.startswith("v_") and not op2.startswith("v_mfma"):
                    rw = set().union(*[regs(x) for x in t2])
                    assert not (D & rw), ("mfma->valu", body[i], body[(i+d) % n], d)
                if op2.startswith("v_mfma"):
                    assert not (D & (regs(t2[1]) | regs(t2[2]))), ("mfma->mfmaAB", body[i], body[(i+d)%n])
                    if D & regs(t2[3]): assert regs(t2[3]) == D or d > 6
                if op2.startswith("ds_") : assert not (D & regs(t2[0]))
            if op.startswith("v_") and not op.startswith("v_mfma") and d <= 2 and op2.startswith("v_mfma"):
                assert not (regs(t[0]) & (regs(t2[1]) | regs(t2[2]) | regs(t2[3]))), ("valu->mfma", body[i], body[(i+d)%n], d)
            if op.startswith("v_exp") and d == 1 and op2.startswith("v_") and not op2.startswith("v_exp"):
                assert not (regs(t[0]) & set().union(*[regs(x) for x in t2[1:]])), ("trans", body[i], body[(i+d)%n])
            if op.startswith("v_mfma") and d <= 3 and op2.startswith("v_") and not op2.startswith("v_mfma"):
                assert not (regs(t[3]) & regs(t2[0])), ("srcC war", body[i], body[(i+d)%n])
            if t and t[0] == "m0" and d == 1: assert not op2.startswith("buffer_load"), "m0"
    last = None
    for ins in body + body:
        op = ins.split()[0]
        if op == "s_cselect_b32": assert last == "s_sub_u32", (ins, last)
        elif op in ("s_add_u32", "s_sub_u32", "s_and_b32", "s_cmp_lg_u32"): last = op
def isize(ins):
    op, t = parse(ins)
    if op.startswith(("v_mfma", "ds_", "buffer_", "v_cvt_pk")): return 8
    if op.endswith("_e64"): return 8
    if op.startswith("v_"): return 4
    if op in ("s_nop", "s_waitcnt", "s_barrier"): return 4
    for x in t[1:]:
        if re.match(r"^(0x[0-9a-f]+|\d+)$", x) and int(x, 0) > 64: return 8
    return 4
def flexible(ins): return ins.split()[0] in ("v_exp_f32", "v_add_f32")
def align(body):
    out = []; off = 0; bad = 0
    for i, ins in enumerate(body):
        if flexible(ins) and off % 8 == 0:
            nxt = body[i+1] if i + 1 < len(body) else "s_nop 0"
            if isize(nxt) == 8 and not flexible(nxt):
                op, _, rest = ins.partition(" "); ins = f"{op}_e64 {rest}"
        if isize(ins) == 8 and off % 8: bad += 1
        out.append(ins); off += isize(ins)
    return out, bad, off

IV = [6, 8, 10, 14]
def store_tile(base, ndt, inv, soff, tmp0):
    r_ = []
    n = ndt // 2
    for dp in range(n):
        for k_ in range(0, 8, 2):
            r = base + 8*dp + k_
            r_.append(f"v_pk_mul_f32 {vr(r,2)}, {vr(r,2)}, {vr(inv,2)} op_sel_hi:[1,0]")
    for dp in range(n):
        for k_ in range(4):
            r_.append(f"v_cvt_pk_bf16_f32 v{tmp0+4*dp+k_}, v{base+8*dp+2*k_}, v{base+8*dp+2*k_+1}")
    if n < 4: r_.append("s_nop 1")
    for dp in range(n):
        t = tmp0 + 4*dp
        r_.append(f"v_permlane16_swap_b32 v{t}, v{t+2}")
        r_.append(f"v_permlane16_swap_b32 v{t+1}, v{t+3}")
        r_.append(f"buffer_store_dwordx4 {vr(t,4)}, v5, {srd(SO_)}, s{soff} offen offset:{dp*64} {args.ont}")
    return r_
def finish_tile(x):
    iv = IV[x]; lv = LV + x
    if len(MSUM) == 9:
        r_ = [f"v_accvgpr_read_b32 v{iv}, a{LA+4*x}", f"s_lshl_b32 s{sT}, s{sW}, 14",
              (f"v_add_f32 v1, v1, v{iv}" if x else f"v_mov_b32 v1, v{iv}"), f"v_rcp_f32 v{iv}, v{iv}",
              f"s_add_u32 s{sT}, s{sT}, {x*4096}"]
    else:
      r_ = [f"v_mov_b32 v{iv}, v{lv}", f"v_accvgpr_read_b32 v{iv+1}, a{LA+4*x}", "s_nop 0",
          f"v_permlane16_swap_b32 v{lv}, v{iv}", f"s_lshl_b32 s{sT}, s{sW}, 14",
          f"v_add_f32 v{lv}, v{lv}, v{iv}", f"v_mov_b32 v{iv}, v{lv}", f"s_add_u32 s{sT}, s{sT}, {x*4096}", "s_nop 0",
          f"v_permlane32_swap_b32 v{lv}, v{iv}", f"v_add_f32 v{iv+1}, v{iv+1}, v{lv}" , f"v_add_f32 v{iv}, v{iv}, v{iv+1}",
          (f"v_add_f32 v1, v1, v{iv}" if x else f"v_mov_b32 v1, v{iv}"), f"v_rcp_f32 v{iv}, v{iv}", "s_nop 0"]
    return r_ + store_tile(O(x,0), 8, iv, sT, TMPB[x])
TMPB = [O(x,0) for x in range(4)]

def make_body(pos, kind):
    last = kind == 'last'
    hus = HUS_LAST if last else HUS
    msum = set(range(9)) if last else MSUM
    plen = [16 + (1 if ((u - 1) % 9) in msum else 0) for u in range(9)]
    P0 = [sum(plen[:u]) for u in range(10)]
    NG = P0[9]
    def gp(u, k): return (P0[u % 9] + k) % NG
    mf = [None]*NG
    for u, (x, p) in enumerate(hus):
        sb = SV + 8*(u % 3); pb = PV + 4*(u % 3)
        for kt in range(2):
            for ks in range(4):
                cc = vr(CI+4*x,4) if ks == 0 else vr(sb+4*kt,4)
                a_, b_ = ar(KF(p,kt,ks),4), ar(QA+16*x+4*ks,4)
                if "qkswap" in args.diag: a_, b_ = b_, a_
                slot = 4*kt+ks if "qkint" not in args.diag else 2*ks+kt
                mf[gp(u, slot)] = f"{MF} {vr(sb+4*kt,4)}, {a_}, {b_}, {cc}"
        for dt in range(8):
            a_, b_ = ar(VF(p,dt),4), vr(pb,4)
            if "pvswap" in args.diag: a_, b_ = b_, a_
            mf[gp(u+1, 8+dt)] = f"{MF} {vr(O(x,dt),4)}, {a_}, {b_}, {vr(O(x,dt),4)}"
        if u in msum:
            mf[gp(u+1, 16)] = f"{MF} {ar(LA+4*x,4)}, {ar(ONES,4)}, {vr(pb,4)}, {ar(LA+4*x,4)}"
    assert all(mf)
    pre = [[] for _ in range(NG)]; val = [[] for _ in range(NG)]; cap = [2]*NG; expg = {}
    for u, (x, p) in enumerate(hus):
        sb = SV + 8*(u % 3); pb = PV + 4*(u % 3)
        eg_ = [gp(u,7), gp(u,9), gp(u,11), gp(u,13), gp(u,15), gp(u+1,0), gp(u+1,2), gp(u+1,4)]
        cg_ = [gp(u,10), gp(u,14), gp(u+1,1), gp(u+1,5)]
        for el in range(8):
            val[eg_[el]].append(f"v_exp_f32 v{sb+el}, v{sb+el}"); cap[eg_[el]] -= 2; expg[(u, el)] = eg_[el]
        for k_ in range(4):
            val[cg_[k_]].append(f"v_cvt_pk_bf16_f32 v{pb+k_}, v{sb+2*k_}, v{sb+2*k_+1}"); cap[cg_[k_]] -= 1
    assert min(cap) >= 0
    bu, bk = (int(x) for x in args.bar.split(","))
    BAR = gp(bu, bk) if not last else -1
    XG = [g for g in range(NG) if cap[g] == 2]
    DG = []
    if not last:
        g = BAR + 3
        while len(DG) < 8:
            g = min(x for x in XG if x >= g); DG.append(g); cap[g] -= args.dcost; g += args.dstep
    items = []
    def item(r, d, kind_, text, chain): items.append(dict(r=r, d=d, kind=kind_, text=text, chain=chain))
    if last:
        for s_ in kr(pos, 1): item(0, gp(0,10), 'lds', s_, 'k1')
        for n, s_ in enumerate(vrd(pos, 1)): item(gp(0, 8 + n//2), gp(2,1), 'lds', s_, 'v1')
    else:
        for s_ in kr(pos, 1): item(0, gp(2,0), 'lds', s_, 'k1')
        for n, s_ in enumerate(vrd(pos, 1)): item(gp(0, 8 + n//2), BAR - 6, 'lds', s_, 'v1')
        for s_ in kr(1 - pos, 0): item(BAR + 1, gp(6,8), 'lds', s_, 'k0')
        for n, s_ in enumerate(vrd(1 - pos, 0)): item(max(gp(4, 8 + n//2), BAR + 1), NG - 7, 'lds', s_, 'v0')
    for u, (x, p) in enumerate(hus):
        if u in msum: continue
        for el in range(8):
            r = expg[(u, el)] + 1
            item(r, min(r + 22, NG - 1), 'valu', f"v_add_f32 v{LV+x}, v{LV+x}, v{SV+8*(u%3)+el}", f"sum{u}")
    done = set()
    for g in range(NG):
        while cap[g] > 0:
            cand = []; seen = set()
            for i, it in enumerate(items):
                if i in done or it['chain'] in seen: continue
                seen.add(it['chain'])
                if it['r'] > g: continue
                if it['kind'] == 'lds' and (g == BAR or g in DG or len(pre[g]) >= (1 if args.lds1 and not last else 2)): continue
                cand.append((it['d'], i))
            if not cand: break
            _, i = min(cand)
            it = items[i]; done.add(i)
            assert g <= it['d'], ("deadline miss", it, g)
            (pre if it['kind'] == 'lds' else val)[g].append(it['text']); cap[g] -= 1
            it['g'] = g
    assert len(done) == len(items), [it for i, it in enumerate(items) if i not in done]
    def gl(ch): return [it['g'] for it in items if it['chain'] == ch]
    def free_slot(g0, n, g1=None):
        out = []; g = g0
        while len(out) < n:
            if not pre[g] and g not in DG and g != BAR: out.append(g)
            g += 1
        if g1 is not None: assert out[-1] <= g1, (out, g1)
        return out
    if last:
        gk = gp(0,15); assert not pre[gk] and max(gl('k1')) < gk
        nv = sum(1 for g in gl('v1') if g <= gk and g >= max(gl('k1')))
        after = [it for it in items if it['chain'] == 'v1' and it['g'] <= gk and
                 (it['g'] > max(gl('k1')) or (it['g'] == max(gl('k1')) and pre[it['g']].index(it['text']) > max(pre[it['g']].index(t) for t in pre[it['g']] if t.startswith("ds_read_b128"))))]
        pre[gk].append(f"s_waitcnt lgkmcnt({len(after)})")
        gv = gp(2,7); assert not pre[gv] and max(gl('v1')) < gv
        pre[gv].append("s_waitcnt lgkmcnt(0)")
        for x in range(3):
            val[gp(2*x + 3, 3)] += finish_tile(x)
    else:
        w = [g for g in range(max(gl('v1')) + 1, BAR) if not pre[g]]
        pre[w[-2]].append("s_waitcnt vmcnt(0)")
        pre[w[-1]].append("s_waitcnt lgkmcnt(0)")
        pre[BAR].append("s_barrier")
        d0 = dma_group(pos, 0); d1 = dma_group(pos, 1)
        pre[free_slot(BAR + 1, 1, DG[0] - 1)[0]].append(d0[0])
        pre[free_slot(DG[3] + 1, 1, DG[4] - 1)[0]].append(d1[0])
        for g, s_ in zip(DG, d0[1:] + d1[1:]): pre[g].append(s_)
        adv = free_slot(DG[-1] + 1, 5)
        for g, s_ in zip(adv, dma_advance()): pre[g].append(s_)
        w = [g for g in range(max(max(gl('v0')), adv[-1]) + 1, NG) if not pre[g]]
        if kind == 'cnt':
            pre[w[-3]].append(f"s_sub_u32 s{sCNT}, s{sCNT}, 1")
            pre[w[-2]].append(f"s_cmp_lg_u32 s{sCNT}, 0")
        pre[w[-1]].append("s_waitcnt lgkmcnt(0)")
    for u in range(9):
        for (m_last, eg_) in ((3, 7), (7, 15), (16 if plen[u] == 17 else 15, plen[u] + 3)):
            gs = [gp(u, k) for k in range(m_last, eg_)]
            cnt = lambda: sum(len(pre[g]) + len(val[g]) for g in gs) + (eg_ - m_last) + len(pre[gp(u, eg_)])
            if eg_ > 15 and not last: continue
            for g in gs + [gp(u, eg_)]:
                if cnt() >= 8: break
                if not pre[g]: pre[g].append("s_nop 0")
            assert cnt() >= 8
    body = []
    for g in range(NG):
        body.append(mf[g]); body += pre[g]; body += val[g]
    if args.report and kind != 'plain':
        for g in range(NG):
            u = max(i for i in range(9) if P0[i] <= g)
            print(g, u, g - P0[u], cap[g], " | ".join(x.split()[0] for x in pre[g]), "||", " | ".join(x.split()[0] for x in val[g][:4]), file=sys.stderr)
        print("free VALU slots:", sum(cap), file=sys.stderr)
    return body
body0 = make_body(0, 'cnt'); body1 = make_body(1, 'plain'); bodyL = make_body(1, 'last')
if 'qkint' not in args.diag:
    check(body0 + body1)
    check(body0 + bodyL + ["s_nop 0"]*12)
body0, bad0, nb0 = align(body0); body1, bad1, nb1 = align(body1); bodyL, badL, nbL = align(bodyL)
if args.report: print("misaligned 8-byte instrs:", bad0, bad1, badL, "bytes:", nb0, nb1, nbL, file=sys.stderr)

sb8 = SV + 8*(8 % 3); pb8 = PV + 4*(8 % 3)
e(f"s_mov_b32 s{sCNT}, 15")
if args.stamp == 4:
    e("s_mov_b32 s56, s60"); e("s_mov_b32 s57, s61"); e("s_mov_b32 s58, 0x100000"); e("s_mov_b32 s59, 0x20000")
if args.stamp:
    e("s_memtime s[66:67]"); e("s_memrealtime s[74:75]")
e("s_waitcnt lgkmcnt(0)")
if args.diagramp:
    for s_ in body0 + body1:
        e(s_)
        if s_.startswith("v_mfma"): e(f"s_nop {args.diagramp}")
for _ in range(args.diagpause): e("s_sleep 32")
L.append(".p2align 6")
lab("L_loop")
if args.diagslow:
    e(f"s_cmp_le_u32 s{sCNT}, {16 - args.diagslow}")
    e("s_cbranch_scc1 L_noslow")
    e("s_sleep 8")
    lab("L_noslow")
    e("s_nop 0")
for s in body1: e(s)
if nb1 % 8: e("s_nop 0")
for s in body0: e(s)
e("s_cbranch_scc1 L_loop")
if nb0 % 8 == 0: e("s_nop 0")
for s in bodyL: e(s)
if args.stamp:
    e("s_memtime s[68:69]"); e("s_memrealtime s[76:77]")
XB = QBASE
c("drain half-unit 8 (shared tile), finish tile 3")
for el in range(done_el, 8): e(f"v_exp_f32 v{sb8+el}, v{sb8+el}")
e("v_lshlrev_b32 v12, 4, v2")
for k_ in range(done_cv, 4): e(f"v_cvt_pk_bf16_f32 v{pb8+k_}, v{sb8+2*k_}, v{sb8+2*k_+1}")
e(f"v_add_u32 v12, {XB}, v12")
e("v_lshlrev_b32 v13, 2, v2")
e(f"{MF} {ar(LA+16,4)}, {ar(ONES,4)}, {vr(pb8,4)}, {ar(LA+16,4)}")
for dt in range(8): e(f"{MF} {vr(O(4,dt),4)}, {ar(VF(1,dt),4)}, {vr(pb8,4)}, {vr(O(4,dt),4)}")
e(f"v_add_u32 v13, {XB}, v13")
e(f"s_lshl_b32 s{sT}, s{sW}, 12")
e(f"v_add_u32 v7, s{sT}, v12")
e(f"s_xor_b32 s{sT}, s{sT}, 4096")
e(f"v_add_u32 v12, s{sT}, v12")
e(f"s_lshl_b32 s{sT}, s{sW}, 9")
e(f"v_add_u32 v9, s{sT}, v13")
e(f"s_xor_b32 s{sT}, s{sT}, 512")
e(f"v_add_u32 v11, s{sT}, v13")
f3 = finish_tile(3)
k3 = next(i for i, x in enumerate(f3) if x.startswith("v_pk_mul"))
for s_ in f3[:k3]: e(s_)
e(f"v_accvgpr_read_b32 v{SV+16}, a{LA+16}")
e(f"s_and_b32 s{sT2}, s{sW}, 1")
e(f"v_add_f32 v1, v1, v{SV+16}")
c("even wave keeps d-tiles 0..3 of the shared tile and hands over 4..7; odd wave the reverse")
e(f"s_cmp_eq_u32 s{sT2}, 0")
e("s_cbranch_scc1 L_even")
for i in range(4): e(f"ds_write_b128 v7, {vr(O(4,i),4)} offset:{i*1024}")
e("s_nop 3")
for i in range(16): e(f"v_mov_b32 v{O(4,0)+i}, v{O(4,4)+i}")
e("s_branch L_wdone")
lab("L_even")
for i in range(4): e(f"ds_write_b128 v7, {vr(O(4,4+i),4)} offset:{i*1024}")
lab("L_wdone")
e(f"ds_write_b32 v9, v{SV+16} offset:16384")
e(f"ds_write_b32 v9, v1 offset:16640")
e("s_waitcnt lgkmcnt(0)")
e("s_barrier")
for i in range(4): e(f"ds_read_b128 {vr(O(4,4+i),4)}, v12 offset:{i*1024}")
e(f"ds_read_b32 v{SV+17}, v11 offset:16384")
for ww in range(4): e(f"ds_read_b32 v{16+ww}, v13 offset:{16640+ww*512}")
for s_ in f3[k3:]: e(s_)
e("s_waitcnt lgkmcnt(0)")
e("v_add_f32 v16, v16, v17"); e("v_add_f32 v18, v18, v19"); e(f"v_add_f32 v6, v{SV+16}, v{SV+17}"); e("v_add_f32 v16, v16, v18")
e(f"v_mov_b32 v17, {'0' if args.forcefb else '0x53800000'}")
e("v_cmp_nlt_f32 vcc, v16, v17")
e("v_rcp_f32 v6, v6")
e(f"s_cmp_lg_u32 s{sPASS}, 0")
e("s_cbranch_scc1 L_nofb")
e("s_cbranch_vccnz L_fallback")
lab("L_nofb")
for r in range(0, 16, 2): e(f"v_pk_add_f32 {vr(O(4,0)+r,2)}, {vr(O(4,0)+r,2)}, {vr(O(4,4)+r,2)}")
e(f"s_lshr_b32 s{sT}, s{sW}, 1")
e(f"s_lshl_b32 s{sT}, s{sT}, 12")
e(f"s_lshl_b32 s{sT2}, s{sT2}, 7")
e(f"s_add_u32 s{sT}, s{sT}, s{sT2}")
e(f"s_add_u32 s{sT}, s{sT}, 65536")
for s_ in store_tile(O(4,0), 4, 6, sT, SV): e(s_)
if args.stamp:
    e("s_memtime s[70:71]")
    e("s_memrealtime s[72:73]")
    if args.stamp == 5:
        e("s_waitcnt vmcnt(0)"); e("s_memtime s[92:93]")
    e("s_waitcnt lgkmcnt(0)")
    if args.stamp == 5: e("s_mov_b32 s62, s68")
    e("s_cmp_lg_u32 s2, 5")
    e("s_cbranch_scc1 L_end")
    e("s_mov_b32 s56, s60"); e("s_mov_b32 s57, s61"); e("s_mov_b32 s58, 256"); e("s_mov_b32 s59, 0x20000")
    for a, b in ((66,62),(68,62),(70,62),(74,64),(76,64),(72,64),(78,62),(80,62),(84,62),(86,62),(88,62),(92,62)): e(f"s_sub_u32 s{a}, s{a}, s{b}")
    for i, a in enumerate((80,84,66,68,70,74,76,72) if args.stamp in (1, 4) else (78,80,84,86,88,70,92,68) if args.stamp == 5 else (86,88,78,80,92,84,66,68)): e(f"v_mov_b32 v{8+i}, s{a}")
    e(f"s_lshl_b32 s{sT}, s{sW}, 5")
    e(f"v_mov_b32 v6, s{sT}")
    e("buffer_store_dwordx4 v[8:11], v6, s[56:59], 0 offen")
    e("buffer_store_dwordx4 v[12:15], v6, s[56:59], 0 offen offset:16")
lab("L_end")
e("s_endpgm")

lab("L_fallback")
c("some row outgrew its reference max: exact row maxima over all keys, then run the main pass again")
e(f"s_mov_b32 s{SK_+2}, 0x80000")
e(f"s_mov_b32 s{sPASS}, 1")
e(f"s_mov_b32 s{sT}, 0")
e(f"v_lshlrev_b32 v{PV}, 8, v3")
e(f"v_lshl_add_u32 v{PV}, v4, 4, v{PV}")
for x in range(5): e(f"v_mov_b32 v{MX[x]}, 0xff800000")
lab("L_fbloop")
e(f"s_add_u32 s{sT2}, s{sT}, 4096")
for kt in range(2):
    for ks in range(4):
        e(f"buffer_load_dwordx4 {ar(KF(1,kt,ks),4)}, v{PV}, {srd(SK_)}, s{sT2 if kt else sT} offen offset:{ks*64}")
e("s_waitcnt vmcnt(0)")
for x in range(5):
    for kt in range(2):
        for ks in range(4):
            sreg = 16 + 8*x + 4*kt
            cc = "0" if ks == 0 else vr(sreg,4)
            e(f"{MF} {vr(sreg,4)}, {ar(KF(1,kt,ks),4)}, {ar(QA+16*x+4*ks,4)}, {cc}")
e("s_nop 7")
for x in range(5):
    for i in range(0, 8, 2):
        e(f"v_max3_f32 v{MX[x]}, v{MX[x]}, v{16+8*x+i}, v{16+8*x+i+1}")
e(f"s_add_u32 s{sT}, s{sT}, 8192")
e(f"s_cmp_lt_u32 s{sT}, 0x80000")
e("s_cbranch_scc1 L_fbloop")
cross_and_cinit()
e("s_barrier")
e("s_branch L_restart")
lab("L_codeend")

L.append('.section .rodata,"a"\n.p2align 6')
L.append(f".amdhsa_kernel {KN}")
L.append("  .amdhsa_next_free_vgpr 512\n  .amdhsa_next_free_sgpr 102\n  .amdhsa_accum_offset 256\n  .amdhsa_group_segment_fixed_size 0\n  .amdhsa_kernarg_size 48\n  .amdhsa_user_sgpr_count 2\n  .amdhsa_user_sgpr_kernarg_segment_ptr 1\n  .amdhsa_system_sgpr_workgroup_id_x 1\n.end_amdhsa_kernel")
print("\n".join(L))
```

```python
import sys, argparse, re
ap = argparse.ArgumentParser()
ap.add_argument("--nt", default="nt")
ap.add_argument("--qnt", default="nt")
ap.add_argument("--ont", default="")
ap.add_argument("--rot", type=int, default=0)
ap.add_argument("--stamp", type=int, default=0)
ap.add_argument("--forcefb", type=int, default=0)
ap.add_argument("--report", type=int, default=0)
ap.add_argument("--msum", default="0,1,2,3,4,5,6,7,8")
ap.add_argument("--dstep", type=int, default=8)
ap.add_argument("--bar", default="3,14")
ap.add_argument("--otouch", type=int, default=0)
ap.add_argument("--full", type=int, default=0)
ap.add_argument("--diagpause", type=int, default=0)
ap.add_argument("--diagslow", type=int, default=0)
ap.add_argument("--dcost", type=int, default=1)
ap.add_argument("--lds1", type=int, default=0)
ap.add_argument("--diag", default="")
ap.add_argument("--diagramp", type=int, default=0)
ap.add_argument("--diagpad", type=int, default=0)
ap.add_argument("--abl", default="")
ap.add_argument("--late", type=int, default=-1)
args = ap.parse_args()
MSUM = set(int(x) for x in args.msum.split(","))
assert 8 in MSUM

KN = "standalone__mha_softmax__near_ridge_kernel"
L = []
def e(s): L.append("    " + s)
def lab(s): L.append(s + ":")
def c(s): L.append("    ; " + s)

def O(x, dt): return 16 + 32*x + 4*dt
SV = 176; PV = 200; CI = 212
def KA(p, m): return 232 + 2*p + m
def VA(p, x): return 236 + 4*p + x
DK = 244; DV = 248; LV = 252
QA = 0
def KF(b, kt, ks): return 80 + 32*b + 16*kt + 4*ks
def VF(b, dt): return 144 + 32*b + 4*dt
LA = 208; ONES = 228; ZER = 232
SK_, SV_, SQ_, SO_ = 8, 12, 16, 20
sW = 24; sGOFF = 26; sFB = 27; sREM = 28; sT = 34; sCNT = 35; sPASS = 36; sC = 37; sT2 = 38; sG0 = 39
sQL = 50; sQG = 51; sQC = 52; sQCG = 53; sQCL = 54; sSC = 55; sHI = 25; sDKO = 29
SLOT = 32768; QBASE = 65536; LDS = QBASE + 73728
def srd(b): return f"s[{b}:{b+3}]"
def vr(b, n): return f"v[{b}:{b+n-1}]"
def ar(b, n): return f"a[{b}:{b+n-1}]"
MF = "v_mfma_f32_16x16x32_bf16"
MF32 = "v_mfma_f32_32x32x16_bf16"
def stamp(r):
    if args.stamp and args.stamp != 5: e(f"s_memtime s[{r}:{r+1}]")

hdr = open("standalone__mha_softmax__near_ridge.s.ref").read().split("\n")
for ln in hdr:
    if ln.startswith("; @launch"): break
    if ln.startswith(";"): L.append(ln)
L.append(f"; @launch grid=(256,1,1) block=(256,1,1) lds={LDS}")
L.append("""; ---------------------------------------------------------------------------------------------------------------
;    between the two waves of a pair and added up through LDS at the end.  v_mfma_f32_16x16x32_bf16 throughout:
;    K fragments by ds_read_b128, V fragments by ds_read_b64_tr_b16, double-buffered in AGPRs.
; ---------------------------------------------------------------------------------------------------------------""")
L.append('.amdgcn_target "amdgcn-amd-amdhsa--gfx950"')
L.append(f".text\n.globl {KN}\n.p2align 8\n.type {KN},@function")
lab(KN)
e("s_cmp_ge_u32 s2, 256")
e("s_cbranch_scc1 L_end")
e("s_load_dwordx8 s[40:47], s[0:1], 0")
if args.stamp:
    e("s_load_dwordx2 s[60:61], s[0:1], 32")
    e("s_memtime s[62:63]")
    e("s_memrealtime s[64:65]")
c("pull this kernel's code into L2 so that instruction fetch does not go to HBM line by line")
e("s_getpc_b64 s[48:49]")
lab("L_pc")
e("v_lshlrev_b32 v1, 7, v0")
e("v_min_u32 v1, L_codeend-L_pc-4, v1")
e(f"global_load_dword v{SV}, v1, s[48:49]")
e("v_lshrrev_b32 v1, 6, v0")
e("v_and_b32 v2, 63, v0")
e(f"v_readfirstlane_b32 s{sW}, v1")
e("v_lshrrev_b32 v6, 3, v2")
e("v_and_b32 v7, 7, v2")
c("DMA per-lane source offsets; for K/V this wave moves group sub = w>>1, dh = w&1 of every 64-key slot")
e("v_lshrrev_b32 v9, 1, v6")
e("v_lshlrev_b32 v8, 8, v6")
e("v_xor_b32 v10, v9, v7")
e("v_lshl_add_u32 v12, v10, 4, v8")
e("v_xor_b32 v10, 4, v10")
e("v_lshl_add_u32 v13, v10, 4, v8")
e("v_add_u32 v13, 2048, v13")
e(f"s_lshr_b32 s{sT}, s{sW}, 1")
e(f"s_lshl_b32 s{sT}, s{sT}, 13")
e(f"s_and_b32 s{sT2}, s{sW}, 1")
e(f"s_lshl_b32 s{sT2}, s{sT2}, 7")
e(f"s_add_u32 s{sT}, s{sT}, s{sT2}")
e(f"v_add_u32 v{DK}, s{sT}, v12")
e(f"v_add_u32 v{DK+1}, s{sT}, v13")
e(f"v_subrev_u32 v{DK+1}, 1024, v{DK+1}")
e(f"v_add_u32 v{DK+2}, 2048, v{DK}")
e(f"v_add_u32 v{DK+3}, 2048, v{DK+1}")
e("v_lshlrev_b32 v10, 1, v9")
e("v_xor_b32 v10, v10, v7")
e("v_lshl_add_u32 v10, v10, 4, v8")
e(f"v_add_u32 v{DV}, s{sT}, v10")
for rb in range(1, 4): e(f"v_add_u32 v{DV+rb}, {rb*1024}, v{DV}")
e(f"s_lshl_b32 s{sQG}, s{sW}, 14")
e(f"s_add_u32 s{sQL}, s{sQG}, {QBASE}")
e(f"s_lshr_b32 s{sT}, s{sW}, 1")
e(f"s_lshl_b32 s{sT}, s{sT}, 12")
e(f"s_add_u32 s{sT}, s{sT}, 65536")
e(f"s_add_u32 s{sQC}, s{sT}, {QBASE}")
e(f"s_and_b32 s{sC}, s{sW}, 1")
e(f"s_lshl_b32 s{sT2}, s{sC}, 7")
e(f"s_add_u32 s{sQCG}, s{sT}, s{sT2}")
e(f"s_lshl_b32 s{sC}, s{sC}, 11")
e(f"s_add_u32 s{sQCL}, s{sQC}, s{sC}")
e(f"s_lshr_b32 s{sDKO}, s{sW}, 1")
e(f"s_lshl_b32 s{sDKO}, s{sDKO}, 13")
e(f"s_add_u32 s{sDKO}, s{sDKO}, s{sT2}")
e(f"s_mul_i32 s{sT}, s2, 73728")
e(f"s_lshl_b32 s{sT2}, s2, 19")
e(f"s_mov_b32 s{SQ_+2}, 73728"); e(f"s_mov_b32 s{SQ_+3}, 0x20000")
e(f"s_mov_b32 s{SK_+3}, 0x20000"); e(f"s_mov_b32 s{SV_+3}, 0x20000")
e(f"s_mov_b32 s{SO_+2}, 73728"); e(f"s_mov_b32 s{SO_+3}, 0x20000")
e(f"s_mov_b32 s{sPASS}, 0")
e(f"s_lshl_b32 s{sFB}, s{sW}, 12")
if args.rot:
    e(f"s_mul_i32 s{sG0}, s2, {args.rot}")
    e(f"s_and_b32 s{sG0}, s{sG0}, 31")
    e(f"s_lshl_b32 s{sG0}, s{sG0}, 14")
else:
    e(f"s_mov_b32 s{sG0}, 0")
e("s_waitcnt lgkmcnt(0)")
stamp(86)
e(f"s_add_u32 s{SK_}, s42, s{sT2}"); e(f"s_addc_u32 s{SK_+1}, s43, 0")
e(f"s_add_u32 s{SQ_}, s40, s{sT}"); e(f"s_addc_u32 s{SQ_+1}, s41, 0")
e(f"s_add_u32 s{SV_}, s44, s{sT2}"); e(f"s_addc_u32 s{SV_+1}, s45, 0")
e(f"s_add_u32 s{SO_}, s46, s{sT}"); e(f"s_addc_u32 s{SO_+1}, s47, 0")

def dma_group(pos, kv):
    off = pos*SLOT + kv*16384
    r = [f"s_add_u32 m0, s{sFB}, {off}" if off else f"s_mov_b32 m0, s{sFB}"]
    for rb in range(4):
        v = (DV if kv else DK) + rb
        r.append(f"buffer_load_dwordx4 v{v}, {srd(SV_ if kv else SK_)}, s{sGOFF} offen offset:{rb*1024} {args.nt} lds")
    return r
def dma_advance():
    return [f"s_add_u32 s{sGOFF}, s{sGOFF}, 16384",
            f"s_and_b32 s{sGOFF}, s{sGOFF}, 0x7ffff",
            f"s_sub_u32 s{sREM}, s{sREM}, 1",
            f"s_cselect_b32 s{SK_+2}, 0, s{SK_+2}",
            f"s_cselect_b32 s{SV_+2}, 0, s{SV_+2}"]
def emit_group(pos, kv):
    g = dma_group(pos, kv)
    e(g[0]); e("s_nop 0")
    for s in g[1:]: e(s)
def emit_adv():
    for s in dma_advance(): e(s)

QD = 252; QR = 254; QRC = 224; K0R = 226
lab("L_restart")
e(f"v_subrev_u32 v{QD}, s{sDKO}, v{DK}")
e(f"v_subrev_u32 v{QD+1}, s{sDKO}, v{DK+1}")
e(f"v_add_u32 v{QD+1}, 1024, v{QD+1}")
e(f"s_mov_b32 s{SK_+2}, 0x80000"); e(f"s_mov_b32 s{SV_+2}, 0x80000")
e(f"s_mov_b32 s{sGOFF}, s{sG0}")
e(f"s_mov_b32 s{sREM}, 31")
emit_group(0, 0)
c("Q -> LDS; 4 KB per 16-row tile: [dh][8-row half][1 KB]; the two waves of a pair each bring half of their shared tile")
e(f"s_mov_b32 m0, s{sQCL}")
e("s_nop 0")
e(f"buffer_load_dwordx4 v{QD}, {srd(SQ_)}, s{sQCG} offen {args.qnt} lds")
e(f"s_add_u32 m0, s{sQCL}, 1024")
e("s_nop 0")
e(f"buffer_load_dwordx4 v{QD+1}, {srd(SQ_)}, s{sQCG} offen {args.qnt} lds")
def q_dma(x):
    for dh in range(2):
        e(f"s_add_u32 s{sT2}, s{sQG}, {x*4096 + dh*128}")
        for j in range(2):
            e(f"s_add_u32 m0, s{sQL}, {x*4096 + dh*2048 + j*1024}")
            e("s_nop 0")
            e(f"buffer_load_dwordx4 v{QD+j}, {srd(SQ_)}, s{sT2} offen {args.qnt} lds")
q_dma(0)
stamp(88)
e(f"s_cmp_lg_u32 s{sPASS}, 0")
e("s_cbranch_scc1 L_skipset")
c("(register set-up while the first loads fly)")
e("v_and_b32 v3, 15, v2")
e("v_lshrrev_b32 v4, 4, v2")
e("v_lshlrev_b32 v8, 7, v3")
e("v_lshrrev_b32 v9, 1, v3")
e("v_xor_b32 v9, v9, v4")
e(f"v_lshl_add_u32 v{K0R}, v9, 4, v8")
e("v_xor_b32 v10, 4, v9")
e(f"v_lshl_add_u32 v{K0R+1}, v10, 4, v8")
c("position p works on 32-key subtile (w+1+p)&1 of the slot")
e(f"s_and_b32 s{sT}, s{sW}, 1")
e(f"s_lshl_b32 s{sT}, s{sT}, 13")
e(f"s_xor_b32 s{sT2}, s{sT}, 8192")
for m in range(2):
    e(f"v_add_u32 v{KA(0,m)}, s{sT2}, v{K0R+m}")
    e(f"v_add_u32 v{KA(1,m)}, s{sT}, v{K0R+m}")
    e(f"v_add_u32 v{QR+m}, s{sQL}, v{K0R+m}")
    e(f"v_add_u32 v{QRC+m}, s{sQC}, v{K0R+m}")
e("v_lshrrev_b32 v8, 2, v2")
e("v_lshlrev_b32 v9, 7, v8")
e("v_and_b32 v10, 3, v2")
e("v_lshl_add_u32 v9, v10, 3, v9")
e("v_bfe_u32 v8, v8, 1, 2")
for xx in range(4):
    e(f"v_xor_b32 v11, {xx}, v8")
    e("v_lshl_add_u32 v11, v11, 5, v9")
    e(f"v_add_u32 v{VA(0,xx)}, s{sT2}, v11")
    e(f"v_add_u32 v{VA(1,xx)}, s{sT}, v11")
e("v_lshlrev_b32 v5, 8, v3")
e("v_and_b32 v8, 1, v4")
e("v_lshl_add_u32 v5, v8, 5, v5")
e("v_lshrrev_b32 v8, 1, v4")
e("v_lshl_add_u32 v5, v8, 4, v5")
e("v_cmp_eq_u32 vcc, 0, v10")
e("v_mov_b32 v8, 0")
e("v_mov_b32 v9, 0x3f803f80")
e("v_cndmask_b32 v8, v8, v9, vcc")
for r in range(4): e(f"v_accvgpr_write_b32 a{ZER+r}, 0")
for r in range(4): e(f"v_accvgpr_write_b32 a{ONES+r}, v8")
e(f"s_mov_b32 s{sSC}, 0x3e0293ee")
e(f"s_mov_b32 s{sHI}, 0xffff0000")
lab("L_skipset")
c("zero accumulators with 0*0 MFMAs")
e(f"{MF32} {ar(LA,16)}, {ar(ZER,4)}, {ar(ZER,4)}, 0")
e(f"{MF} {ar(LA+16,4)}, {ar(ZER,4)}, {ar(ZER,4)}, 0")
for b_ in range(16, 176, 16): e(f"{MF32} {vr(b_,16)}, {ar(ZER,4)}, {ar(ZER,4)}, 0")
def kread(pos, p, kt, ks): return f"ds_read_b128 {ar(KF(p,kt,ks),4)}, v{KA(p,ks%2)} offset:{pos*SLOT + kt*2048 + (ks//2)*4096}"
def vread(pos, p, dt, uu): return f"ds_read_b64_tr_b16 {ar(VF(p,dt)+2*uu,2)}, v{VA(p,dt%4)} offset:{pos*SLOT + 16384 + (dt//4)*4096 + uu*2048}"
kr = lambda pos, p: [kread(pos, p, kt, ks) for kt in range(2) for ks in range(4)]
vrd = lambda pos, p: [vread(pos, p, dt, uu) for dt in range(8) for uu in range(2)]
MX = [6, 7, 8, 9, 10]; TX = [11, 12, 13, 14, 15]
def cross_and_cinit(xs=range(5)):
    pad = "s_nop 0" if len(xs) > 1 else "s_nop 1"
    for sw in ("v_permlane16_swap_b32", "v_permlane32_swap_b32"):
        for x in xs: e(f"v_mov_b32 v{TX[x]}, v{MX[x]}")
        e(pad)
        for x in xs: e(f"{sw} v{MX[x]}, v{TX[x]}")
        e("s_nop 0")
        for x in xs: e(f"v_max_f32 v{MX[x]}, v{MX[x]}, v{TX[x]}")
    for x in xs:
        for r in range(4): e(f"v_sub_f32 v{CI+4*x+r}, 0, v{MX[x]}")
QT = 196
qn = [0]
def q_tile(x, nlgkm_after=0):
    qn[0] += 1
    e(f"s_cmp_lg_u32 s{sPASS}, 0")
    e(f"s_cbranch_scc1 L_sq{qn[0]}")
    if x < 4:
        for ks in range(4): e(f"ds_read_b128 {vr(QT+4*ks,4)}, v{QR+ks%2} offset:{x*4096 + (ks//2)*2048}")
    else:
        for ks in range(4): e(f"ds_read_b128 {vr(QT+4*ks,4)}, v{QRC+ks%2} offset:{(ks//2)*2048}")
        for ks in range(4): e(f"ds_read_b128 {ar(VF(1,ks),4)}, v{K0R+ks%2} offset:{(ks//2)*4096}")
    e(f"s_waitcnt lgkmcnt({4 if x == 4 else 0})")
    for r in range(16):
        v = QT + r
        t0 = 6 + 2*(r % 4)
        e(f"v_lshlrev_b32 v{t0}, 16, v{v}")
        e(f"v_and_b32 v{t0+1}, s{sHI}, v{v}")
        e(f"v_mul_f32 v{t0}, s{sSC}, v{t0}")
        e(f"v_mul_f32 v{t0+1}, s{sSC}, v{t0+1}")
        e(f"v_cvt_pk_bf16_f32 v{v}, v{t0}, v{t0+1}")
        if r: e(f"v_accvgpr_write_b32 a{QA+16*x+r-1}, v{v-1}")
    e(f"v_accvgpr_write_b32 a{QA+16*x+15}, v{QT+15}")
    e("s_waitcnt lgkmcnt(0)")
    e("s_nop 0")
    for ks in range(4):
        cc = "0" if ks == 0 else vr(SV,4)
        kf = VF(1,ks) if x == 4 else KF(0,0,ks)
        e(f"{MF} {vr(SV,4)}, {ar(kf,4)}, {ar(QA+16*x+4*ks,4)}, {cc}")
    e("s_nop 7")
    e(f"v_max3_f32 v{MX[x]}, v{SV}, v{SV+1}, v{SV+2}")
    e(f"v_max_f32 v{MX[x]}, v{MX[x]}, v{SV+3}")
    cross_and_cinit([x])
    lab(f"L_sq{qn[0]}")
def s_(i): return SV + 8*i
def p_(i): return PV + 4*i
def qk(x, p, i):
    for kt in range(2):
        for ks in range(4):
            cc = vr(CI+4*x,4) if ks == 0 else vr(s_(i)+4*kt,4)
            e(f"{MF} {vr(s_(i)+4*kt,4)}, {ar(KF(p,kt,ks),4)}, {ar(QA+16*x+4*ks,4)}, {cc}")
def ex(i, n=8):
    for el in range(n): e(f"v_exp_f32 v{s_(i)+el}, v{s_(i)+el}")
def cv(i, n=4):
    for k_ in range(n): e(f"v_cvt_pk_bf16_f32 v{p_(i)+k_}, v{s_(i)+2*k_}, v{s_(i)+2*k_+1}")
def pv(x, p, i):
    for dt in range(8): e(f"{MF} {vr(O(x,dt),4)}, {ar(VF(p,dt),4)}, {vr(p_(i),4)}, {vr(O(x,dt),4)}")
    e(f"{MF} {ar(LA+4*x,4)}, {ar(ONES,4)}, {vr(p_(i),4)}, {ar(LA+4*x,4)}")
def pair_front(a, b):
    e("s_nop 1")
    qk(a[0], a[1], 0); qk(b[0], b[1], 1)
    ex(0); ex(1); cv(0); cv(1); e("s_nop 1")
def pair_back(a, b):
    pv(a[0], a[1], 0); pv(b[0], b[1], 1)
c("---- first 64 keys: worked off tile by tile while Q is still arriving ----")
q_dma(1)
stamp(78)
e("s_waitcnt vmcnt(8)")
e("s_barrier")
stamp(80)
for x_ in kr(0, 0) + kr(0, 1): e(x_)
emit_group(0, 1); emit_adv()
q_tile(4)
e("s_waitcnt vmcnt(8)")
q_dma(2)
q_tile(0)
e("s_waitcnt vmcnt(8)")
q_dma(3)
q_tile(1)
e("s_waitcnt lgkmcnt(0)")
pair_front((0,0), (1,0))
e("s_waitcnt vmcnt(8)")
e("s_barrier")
for x_ in vrd(0, 0) + vrd(0, 1): e(x_)
emit_group(1, 0)
e("s_waitcnt lgkmcnt(15)")
pair_back((0,0), (1,0))
pair_front((0,1), (1,1))
e("s_waitcnt lgkmcnt(0)")
pair_back((0,1), (1,1))
e("s_waitcnt vmcnt(8)")
emit_group(1, 1); emit_adv()
q_tile(2)
pair_front((2,0), (2,1)); pair_back((2,0), (2,1))
e("s_waitcnt vmcnt(8)")
q_tile(3)
pair_front((3,0), (3,1)); pair_back((3,0), (3,1))
done_el = 5; done_cv = 2
qk(4, 1, 2)
stamp(92)
e("s_waitcnt vmcnt(0)")
e("s_barrier")
stamp(84)
for x_ in kr(1, 0) + vrd(1, 0): e(x_)
emit_group(0, 0); emit_group(0, 1); emit_adv()
ex(2, done_el); e("s_nop 0"); cv(2, done_cv)
if len(MSUM) < 9:
    for x in range(4): e(f"v_mov_b32 v{LV+x}, 0")
if args.late >= 0: e(f"s_waitcnt vmcnt({args.late})")

HUS = [(0,0),(1,0),(2,0),(3,0),(0,1),(1,1),(2,1),(3,1),(4,1)]
HUS_LAST = [(0,0),(0,1),(1,0),(1,1),(2,0),(2,1),(3,0),(3,1),(4,1)]

def regs(tok):
    m = re.match(r"([va])\[(\d+):(\d+)\]", tok)
    if m: return {(m.group(1), i) for i in range(int(m.group(2)), int(m.group(3))+1)}
    m = re.match(r"([va])(\d+)$", tok)
    if m: return {(m.group(1), int(m.group(2)))}
    return set()
def parse(ins):
    op, _, rest = ins.partition(" ")
    toks = [t.strip() for t in rest.split(",")]
    toks = [t.split()[0] if t else t for t in toks]
    return op, toks
def check(body):
    n = len(body); P = [parse(x) for x in body]
    for i, (op, t) in enumerate(P):
        for d in range(1, 12):
            op2, t2 = P[(i + d) % n]
            if op.startswith("v_mfma") and d <= 8:
                D = regs(t[0])
                if op2.startswith("v_") and not op2.startswith("v_mfma"):
                    rw = set().union(*[regs(x) for x in t2])
                    assert not (D & rw), ("mfma->valu", body[i], body[(i+d) % n], d)
                if op2.startswith("v_mfma"):
                    assert not (D & (regs(t2[1]) | regs(t2[2]))), ("mfma->mfmaAB", body[i], body[(i+d)%n])
                    if D & regs(t2[3]): assert regs(t2[3]) == D or d > 6
                if op2.startswith("ds_") : assert not (D & regs(t2[0]))
            if op.startswith("v_") and not op.startswith("v_mfma") and d <= 2 and op2.startswith("v_mfma"):
                assert not (regs(t[0]) & (regs(t2[1]) | regs(t2[2]) | regs(t2[3]))), ("valu->mfma", body[i], body[(i+d)%n], d)
            if op.startswith("v_exp") and d == 1 and op2.startswith("v_") and not op2.startswith("v_exp"):
                assert not (regs(t[0]) & set().union(*[regs(x) for x in t2[1:]])), ("trans", body[i], body[(i+d)%n])
            if op.startswith("v_mfma") and d <= 3 and op2.startswith("v_") and not op2.startswith("v_mfma"):
                assert not (regs(t[3]) & regs(t2[0])), ("srcC war", body[i], body[(i+d)%n])
            if t and t[0] == "m0" and d == 1: assert not op2.startswith("buffer_load"), "m0"
    last = None
    for ins in body + body:
        op = ins.split()[0]
        if op == "s_cselect_b32": assert last == "s_sub_u32", (ins, last)
        elif op in ("s_add_u32", "s_sub_u32", "s_and_b32", "s_cmp_lg_u32"): last = op
def isize(ins):
    op, t = parse(ins)
    if op.startswith(("v_mfma", "ds_", "buffer_", "v_cvt_pk")): return 8
    if op.endswith("_e64"): return 8
    if op.startswith("v_"): return 4
    if op in ("s_nop", "s_waitcnt", "s_barrier"): return 4
    for x in t[1:]:
        if re.match(r"^(0x[0-9a-f]+|\d+)$", x) and int(x, 0) > 64: return 8
    return 4
def flexible(ins): return ins.split()[0] in ("v_exp_f32", "v_add_f32")
def align(body):
    out = []; off = 0; bad = 0
    for i, ins in enumerate(body):
        if flexible(ins) and off % 8 == 0:
            nxt = body[i+1] if i + 1 < len(body) else "s_nop 0"
            if isize(nxt) == 8 and not flexible(nxt):
                op, _, rest = ins.partition(" "); ins = f"{op}_e64 {rest}"
        if isize(ins) == 8 and off % 8: bad += 1
        out.append(ins); off += isize(ins)
    return out, bad, off

IV = [6, 8, 10, 14]
def store_tile(base, ndt, inv, soff, tmp0):
    r_ = []
    n = ndt // 2
    for dp in range(n):
        for k_ in range(0, 8, 2):
            r = base + 8*dp + k_
            r_.append(f"v_pk_mul_f32 {vr(r,2)}, {vr(r,2)}, {vr(inv,2)} op_sel_hi:[1,0]")
    for dp in range(n):
        for k_ in range(4):
            r_.append(f"v_cvt_pk_bf16_f32 v{tmp0+4*dp+k_}, v{base+8*dp+2*k_}, v{base+8*dp+2*k_+1}")
    if n < 4: r_.append("s_nop 1")
    for dp in range(n):
        t = tmp0 + 4*dp
        r_.append(f"v_permlane16_swap_b32 v{t}, v{t+2}")
        r_.append(f"v_permlane16_swap_b32 v{t+1}, v{t+3}")
        r_.append(f"buffer_store_dwordx4 {vr(t,4)}, v5, {srd(SO_)}, s{soff} offen offset:{dp*64} {args.ont}")
    return r_
def finish_tile(x):
    iv = IV[x]; lv = LV + x
    if len(MSUM) == 9:
        r_ = [f"v_accvgpr_read_b32 v{iv}, a{LA+4*x}", f"s_lshl_b32 s{sT}, s{sW}, 14",
              (f"v_add_f32 v1, v1, v{iv}" if x else f"v_mov_b32 v1, v{iv}"), f"v_rcp_f32 v{iv}, v{iv}",
              f"s_add_u32 s{sT}, s{sT}, {x*4096}"]
    else:
      r_ = [f"v_mov_b32 v{iv}, v{lv}", f"v_accvgpr_read_b32 v{iv+1}, a{LA+4*x}", "s_nop 0",
          f"v_permlane16_swap_b32 v{lv}, v{iv}", f"s_lshl_b32 s{sT}, s{sW}, 14",
          f"v_add_f32 v{lv}, v{lv}, v{iv}", f"v_mov_b32 v{iv}, v{lv}", f"s_add_u32 s{sT}, s{sT}, {x*4096}", "s_nop 0",
          f"v_permlane32_swap_b32 v{lv}, v{iv}", f"v_add_f32 v{iv+1}, v{iv+1}, v{lv}" , f"v_add_f32 v{iv}, v{iv}, v{iv+1}",
          (f"v_add_f32 v1, v1, v{iv}" if x else f"v_mov_b32 v1, v{iv}"), f"v_rcp_f32 v{iv}, v{iv}", "s_nop 0"]
    return r_ + store_tile(O(x,0), 8, iv, sT, TMPB[x])
TMPB = [O(x,0) for x in range(4)]

def make_body(pos, kind):
    last = kind == 'last'
    hus = HUS_LAST if last else HUS
    msum = set(range(9)) if last else MSUM
    plen = [16 + (1 if ((u - 1) % 9) in msum else 0) for u in range(9)]
    P0 = [sum(plen[:u]) for u in range(10)]
    NG = P0[9]
    def gp(u, k): return (P0[u % 9] + k) % NG
    mf = [None]*NG
    for u, (x, p) in enumerate(hus):
        sb = SV + 8*(u % 3); pb = PV + 4*(u % 3)
        for kt in range(2):
            for ks in range(4):
                cc = vr(CI+4*x,4) if ks == 0 else vr(sb+4*kt,4)
                a_, b_ = ar(KF(p,kt,ks),4), ar(QA+16*x+4*ks,4)
                if "qkswap" in args.diag: a_, b_ = b_, a_
                slot = 4*kt+ks if "qkint" not in args.diag else 2*ks+kt
                mf[gp(u, slot)] = f"{MF} {vr(sb+4*kt,4)}, {a_}, {b_}, {cc}"
        for dt in range(8):
            a_, b_ = ar(VF(p,dt),4), vr(pb,4)
            if "pvswap" in args.diag: a_, b_ = b_, a_
            mf[gp(u+1, 8+dt)] = f"{MF} {vr(O(x,dt),4)}, {a_}, {b_}, {vr(O(x,dt),4)}"
        if u in msum:
            mf[gp(u+1, 16)] = f"{MF} {ar(LA+4*x,4)}, {ar(ONES,4)}, {vr(pb,4)}, {ar(LA+4*x,4)}"
    assert all(mf)
    pre = [[] for _ in range(NG)]; val = [[] for _ in range(NG)]; cap = [2]*NG; expg = {}
    for u, (x, p) in enumerate(hus):
        sb = SV + 8*(u % 3); pb = PV + 4*(u % 3)
        eg_ = [gp(u,7), gp(u,9), gp(u,11), gp(u,13), gp(u,15), gp(u+1,0), gp(u+1,2), gp(u+1,4)]
        cg_ = [gp(u,10), gp(u,14), gp(u+1,1), gp(u+1,5)]
        for el in range(8):
            val[eg_[el]].append(f"v_exp_f32 v{sb+el}, v{sb+el}"); cap[eg_[el]] -= 2; expg[(u, el)] = eg_[el]
        for k_ in range(4):
            val[cg_[k_]].append(f"v_cvt_pk_bf16_f32 v{pb+k_}, v{sb+2*k_}, v{sb+2*k_+1}"); cap[cg_[k_]] -= 1
    assert min(cap) >= 0
    bu, bk = (int(x) for x in args.bar.split(","))
    BAR = gp(bu, bk) if not last else -1
    XG = [g for g in range(NG) if cap[g] == 2]
    DG = []
    if not last:
        g = BAR + 3
        while len(DG) < 8:
            g = min(x for x in XG if x >= g); DG.append(g); cap[g] -= args.dcost; g += args.dstep
    items = []
    def item(r, d, kind_, text, chain): items.append(dict(r=r, d=d, kind=kind_, text=text, chain=chain))
    if last:
        for s_ in kr(pos, 1): item(0, gp(0,10), 'lds', s_, 'k1')
        for n, s_ in enumerate(vrd(pos, 1)): item(gp(0, 8 + n//2), gp(2,1), 'lds', s_, 'v1')
    else:
        for s_ in kr(pos, 1): item(0, gp(2,0), 'lds', s_, 'k1')
        for n, s_ in enumerate(vrd(pos, 1)): item(gp(0, 8 + n//2), BAR - 6, 'lds', s_, 'v1')
        for s_ in kr(1 - pos, 0): item(BAR + 1, gp(6,8), 'lds', s_, 'k0')
        for n, s_ in enumerate(vrd(1 - pos, 0)): item(max(gp(4, 8 + n//2), BAR + 1), NG - 7, 'lds', s_, 'v0')
    for u, (x, p) in enumerate(hus):
        if u in msum: continue
        for el in range(8):
            r = expg[(u, el)] + 1
            item(r, min(r + 22, NG - 1), 'valu', f"v_add_f32 v{LV+x}, v{LV+x}, v{SV+8*(u%3)+el}", f"sum{u}")
    done = set()
    for g in range(NG):
        while cap[g] > 0:
            cand = []; seen = set()
            for i, it in enumerate(items):
                if i in done or it['chain'] in seen: continue
                seen.add(it['chain'])
                if it['r'] > g: continue
                if it['kind'] == 'lds' and (g == BAR or g in DG or len(pre[g]) >= (1 if args.lds1 and not last else 2)): continue
                cand.append((it['d'], i))
            if not cand: break
            _, i = min(cand)
            it = items[i]; done.add(i)
            assert g <= it['d'], ("deadline miss", it, g)
            (pre if it['kind'] == 'lds' else val)[g].append(it['text']); cap[g] -= 1
            it['g'] = g
    assert len(done) == len(items), [it for i, it in enumerate(items) if i not in done]
    def gl(ch): return [it['g'] for it in items if it['chain'] == ch]
    def free_slot(g0, n, g1=None):
        out = []; g = g0
        while len(out) < n:
            if not pre[g] and g not in DG and g != BAR: out.append(g)
            g += 1
        if g1 is not None: assert out[-1] <= g1, (out, g1)
        return out
    if last:
        gk = gp(0,15); assert not pre[gk] and max(gl('k1')) < gk
        nv = sum(1 for g in gl('v1') if g <= gk and g >= max(gl('k1')))
        after = [it for it in items if it['chain'] == 'v1' and it['g'] <= gk and
                 (it['g'] > max(gl('k1')) or (it['g'] == max(gl('k1')) and pre[it['g']].index(it['text']) > max(pre[it['g']].index(t) for t in pre[it['g']] if t.startswith("ds_read_b128"))))]
        pre[gk].append(f"s_waitcnt lgkmcnt({len(after)})")
        gv = gp(2,7); assert not pre[gv] and max(gl('v1')) < gv
        pre[gv].append("s_waitcnt lgkmcnt(0)")
        for x in range(3):
            val[gp(2*x + 3, 3)] += finish_tile(x)
    else:
        w = [g for g in range(max(gl('v1')) + 1, BAR) if not pre[g]]
        pre[w[-2]].append("s_waitcnt vmcnt(0)")
        pre[w[-1]].append("s_waitcnt lgkmcnt(0)")
        pre[BAR].append("s_barrier")
        d0 = dma_group(pos, 0); d1 = dma_group(pos, 1)
        pre[free_slot(BAR + 1, 1, DG[0] - 1)[0]].append(d0[0])
        pre[free_slot(DG[3] + 1, 1, DG[4] - 1)[0]].append(d1[0])
        for g, s_ in zip(DG, d0[1:] + d1[1:]): pre[g].append(s_)
        adv = free_slot(DG[-1] + 1, 5)
        for g, s_ in zip(adv, dma_advance()): pre[g].append(s_)
        w = [g for g in range(max(max(gl('v0')), adv[-1]) + 1, NG) if not pre[g]]
        if kind == 'cnt':
            pre[w[-3]].append(f"s_sub_u32 s{sCNT}, s{sCNT}, 1")
            pre[w[-2]].append(f"s_cmp_lg_u32 s{sCNT}, 0")
        pre[w[-1]].append("s_waitcnt lgkmcnt(0)")
    for u in range(9):
        for (m_last, eg_) in ((3, 7), (7, 15), (16 if plen[u] == 17 else 15, plen[u] + 3)):
            gs = [gp(u, k) for k in range(m_last, eg_)]
            cnt = lambda: sum(len(pre[g]) + len(val[g]) for g in gs) + (eg_ - m_last) + len(pre[gp(u, eg_)])
            if eg_ > 15 and not last: continue
            for g in gs + [gp(u, eg_)]:
                if cnt() >= 8: break
                if not pre[g]: pre[g].append("s_nop 0")
            assert cnt() >= 8
    body = []
    for g in range(NG):
        body.append(mf[g]); body += pre[g]; body += val[g]
    if args.report and kind != 'plain':
        for g in range(NG):
            u = max(i for i in range(9) if P0[i] <= g)
            print(g, u, g - P0[u], cap[g], " | ".join(x.split()[0] for x in pre[g]), "||", " | ".join(x.split()[0] for x in val[g][:4]), file=sys.stderr)
        print("free VALU slots:", sum(cap), file=sys.stderr)
    return body
body0 = make_body(0, 'cnt'); body1 = make_body(1, 'plain'); bodyL = make_body(1, 'last')
if 'qkint' not in args.diag:
    check(body0 + body1)
    check(body0 + bodyL + ["s_nop 0"]*12)
body0, bad0, nb0 = align(body0); body1, bad1, nb1 = align(body1); bodyL, badL, nbL = align(bodyL)
if args.report: print("misaligned 8-byte instrs:", bad0, bad1, badL, "bytes:", nb0, nb1, nbL, file=sys.stderr)

sb8 = SV + 8*(8 % 3); pb8 = PV + 4*(8 % 3)
e(f"s_mov_b32 s{sCNT}, 15")
if args.stamp == 4:
    e("s_mov_b32 s56, s60"); e("s_mov_b32 s57, s61"); e("s_mov_b32 s58, 0x100000"); e("s_mov_b32 s59, 0x20000")
if args.stamp:
    e("s_memtime s[66:67]"); e("s_memrealtime s[74:75]")
e("s_waitcnt lgkmcnt(0)")
if args.diagramp:
    for s_ in body0 + body1:
        e(s_)
        if s_.startswith("v_mfma"): e(f"s_nop {args.diagramp}")
for _ in range(args.diagpause): e("s_sleep 32")
L.append(".p2align 6")
lab("L_loop")
if args.diagslow:
    e(f"s_cmp_le_u32 s{sCNT}, {16 - args.diagslow}")
    e("s_cbranch_scc1 L_noslow")
    e("s_sleep 8")
    lab("L_noslow")
    e("s_nop 0")
def padded(b):
    out = []; n = 0
    abl = args.abl.split(",") if args.abl else []
    for x in b:
        op = x.split()[0]
        if ("lds" in abl and op.startswith("ds_read")) or ("exp" in abl and op.startswith("v_exp")) or ("cvt" in abl and op.startswith("v_cvt")) \
           or ("dma" in abl and op.startswith("buffer_load")) or ("kread" in abl and op == "ds_read_b128") or ("vread" in abl and op.startswith("ds_read_b64")):
            if isize(x) == 4: out.append("s_nop 0")
            continue
        if "summ" in abl and f"a[{ONES}:" in x: continue
        if "qk" in abl and op.startswith("v_mfma") and f", a[{QA}" not in x and x.split(",")[2].strip().startswith("a["): x = x
        if x.startswith("v_exp") and args.diagpad:
            n += 1
            out.append(x)
            if n % args.diagpad == 0: out += ["s_nop 0", "s_nop 0"]
        else: out.append(x)
    return out
for s in padded(body1): e(s)
if nb1 % 8: e("s_nop 0")
for s in padded(body0): e(s)
e("s_cbranch_scc1 L_loop")
if nb0 % 8 == 0: e("s_nop 0")
for s in bodyL: e(s)
if args.stamp:
    e("s_memtime s[68:69]"); e("s_memrealtime s[76:77]")
XB = QBASE
c("drain half-unit 8 (shared tile), finish tile 3")
for el in range(done_el, 8): e(f"v_exp_f32 v{sb8+el}, v{sb8+el}")
e("v_lshlrev_b32 v12, 4, v2")
for k_ in range(done_cv, 4): e(f"v_cvt_pk_bf16_f32 v{pb8+k_}, v{sb8+2*k_}, v{sb8+2*k_+1}")
e(f"v_add_u32 v12, {XB}, v12")
e("v_lshlrev_b32 v13, 2, v2")
e(f"{MF} {ar(LA+16,4)}, {ar(ONES,4)}, {vr(pb8,4)}, {ar(LA+16,4)}")
for dt in range(8): e(f"{MF} {vr(O(4,dt),4)}, {ar(VF(1,dt),4)}, {vr(pb8,4)}, {vr(O(4,dt),4)}")
e(f"v_add_u32 v13, {XB}, v13")
e(f"s_lshl_b32 s{sT}, s{sW}, 12")
e(f"v_add_u32 v7, s{sT}, v12")
e(f"s_xor_b32 s{sT}, s{sT}, 4096")
e(f"v_add_u32 v12, s{sT}, v12")
e(f"s_lshl_b32 s{sT}, s{sW}, 9")
e(f"v_add_u32 v9, s{sT}, v13")
e(f"s_xor_b32 s{sT}, s{sT}, 512")
e(f"v_add_u32 v11, s{sT}, v13")
f3 = finish_tile(3)
k3 = next(i for i, x in enumerate(f3) if x.startswith("v_pk_mul"))
for s_ in f3[:k3]: e(s_)
e(f"v_accvgpr_read_b32 v{SV+16}, a{LA+16}")
e(f"s_and_b32 s{sT2}, s{sW}, 1")
e(f"v_add_f32 v1, v1, v{SV+16}")
c("even wave keeps d-tiles 0..3 of the shared tile and hands over 4..7; odd wave the reverse")
e(f"s_cmp_eq_u32 s{sT2}, 0")
e("s_cbranch_scc1 L_even")
for i in range(4): e(f"ds_write_b128 v7, {vr(O(4,i),4)} offset:{i*1024}")
e("s_nop 3")
for i in range(16): e(f"v_mov_b32 v{O(4,0)+i}, v{O(4,4)+i}")
e("s_branch L_wdone")
lab("L_even")
for i in range(4): e(f"ds_write_b128 v7, {vr(O(4,4+i),4)} offset:{i*1024}")
lab("L_wdone")
e(f"ds_write_b32 v9, v{SV+16} offset:16384")
e(f"ds_write_b32 v9, v1 offset:16640")
e("s_waitcnt lgkmcnt(0)")
e("s_barrier")
for i in range(4): e(f"ds_read_b128 {vr(O(4,4+i),4)}, v12 offset:{i*1024}")
e(f"ds_read_b32 v{SV+17}, v11 offset:16384")
for ww in range(4): e(f"ds_read_b32 v{16+ww}, v13 offset:{16640+ww*512}")
for s_ in f3[k3:]: e(s_)
e("s_waitcnt lgkmcnt(0)")
e("v_add_f32 v16, v16, v17"); e("v_add_f32 v18, v18, v19"); e(f"v_add_f32 v6, v{SV+16}, v{SV+17}"); e("v_add_f32 v16, v16, v18")
e(f"v_mov_b32 v17, {'0' if args.forcefb else '0x53800000'}")
e("v_cmp_nlt_f32 vcc, v16, v17")
e("v_rcp_f32 v6, v6")
e(f"s_cmp_lg_u32 s{sPASS}, 0")
e("s_cbranch_scc1 L_nofb")
e("s_cbranch_vccnz L_fallback" if not args.abl else "s_nop 0")
lab("L_nofb")
for r in range(0, 16, 2): e(f"v_pk_add_f32 {vr(O(4,0)+r,2)}, {vr(O(4,0)+r,2)}, {vr(O(4,4)+r,2)}")
e(f"s_lshr_b32 s{sT}, s{sW}, 1")
e(f"s_lshl_b32 s{sT}, s{sT}, 12")
e(f"s_lshl_b32 s{sT2}, s{sT2}, 7")
e(f"s_add_u32 s{sT}, s{sT}, s{sT2}")
e(f"s_add_u32 s{sT}, s{sT}, 65536")
for s_ in store_tile(O(4,0), 4, 6, sT, SV): e(s_)
if args.stamp:
    e("s_memtime s[70:71]")
    e("s_memrealtime s[72:73]")
    if args.stamp == 5:
        e("s_waitcnt vmcnt(0)"); e("s_memtime s[92:93]")
    e("s_waitcnt lgkmcnt(0)")
    if args.stamp == 5: e("s_mov_b32 s62, s68")
    e("s_cmp_lg_u32 s2, 5")
    e("s_cbranch_scc1 L_end")
    e("s_mov_b32 s56, s60"); e("s_mov_b32 s57, s61"); e("s_mov_b32 s58, 256"); e("s_mov_b32 s59, 0x20000")
    for a, b in ((66,62),(68,62),(70,62),(74,64),(76,64),(72,64),(78,62),(80,62),(84,62),(86,62),(88,62),(92,62)): e(f"s_sub_u32 s{a}, s{a}, s{b}")
    for i, a in enumerate((80,84,66,68,70,74,76,72) if args.stamp in (1, 4) else (78,80,84,86,88,70,92,68) if args.stamp == 5 else (86,88,78,80,92,84,66,68)): e(f"v_mov_b32 v{8+i}, s{a}")
    e(f"s_lshl_b32 s{sT}, s{sW}, 5")
    e(f"v_mov_b32 v6, s{sT}")
    e("buffer_store_dwordx4 v[8:11], v6, s[56:59], 0 offen")
    e("buffer_store_dwordx4 v[12:15], v6, s[56:59], 0 offen offset:16")
lab("L_end")
e("s_endpgm")

lab("L_fallback")
c("some row outgrew its reference max: exact row maxima over all keys, then run the main pass again")
e(f"s_mov_b32 s{SK_+2}, 0x80000")
e(f"s_mov_b32 s{sPASS}, 1")
e(f"s_mov_b32 s{sT}, 0")
e(f"v_lshlrev_b32 v{PV}, 8, v3")
e(f"v_lshl_add_u32 v{PV}, v4, 4, v{PV}")
for x in range(5): e(f"v_mov_b32 v{MX[x]}, 0xff800000")
lab("L_fbloop")
e(f"s_add_u32 s{sT2}, s{sT}, 4096")
for kt in range(2):
    for ks in range(4):
        e(f"buffer_load_dwordx4 {ar(KF(1,kt,ks),4)}, v{PV}, {srd(SK_)}, s{sT2 if kt else sT} offen offset:{ks*64}")
e("s_waitcnt vmcnt(0)")
for x in range(5):
    for kt in range(2):
        for ks in range(4):
            sreg = 16 + 8*x + 4*kt
            cc = "0" if ks == 0 else vr(sreg,4)
            e(f"{MF} {vr(sreg,4)}, {ar(KF(1,kt,ks),4)}, {ar(QA+16*x+4*ks,4)}, {cc}")
e("s_nop 7")
for x in range(5):
    for i in range(0, 8, 2):
        e(f"v_max3_f32 v{MX[x]}, v{MX[x]}, v{16+8*x+i}, v{16+8*x+i+1}")
e(f"s_add_u32 s{sT}, s{sT}, 8192")
e(f"s_cmp_lt_u32 s{sT}, 0x80000")
e("s_cbranch_scc1 L_fbloop")
cross_and_cinit()
e("s_barrier")
e("s_branch L_restart")
lab("L_codeend")

L.append('.section .rodata,"a"\n.p2align 6')
L.append(f".amdhsa_kernel {KN}")
L.append("  .amdhsa_next_free_vgpr 512\n  .amdhsa_next_free_sgpr 102\n  .amdhsa_accum_offset 256\n  .amdhsa_group_segment_fixed_size 0\n  .amdhsa_kernarg_size 48\n  .amdhsa_user_sgpr_count 2\n  .amdhsa_user_sgpr_kernarg_segment_ptr 1\n  .amdhsa_system_sgpr_workgroup_id_x 1\n.end_amdhsa_kernel")
print("\n".join(L))
```
